```python
import torch

def _softmax(x, axis=-1):
    return torch.softmax(x, dim=axis)
def _gelu(x):
    return torch.nn.functional.gelu(x, approximate="tanh")
def _silu(x):
    return torch.nn.functional.silu(x)
def _sigmoid(x):
    return torch.sigmoid(x)
def _layernorm(x, axis=-1, eps=1e-5):
    m = x.mean(dim=axis, keepdim=True)
    v = x.var(dim=axis, keepdim=True, unbiased=False)
    return (x - m) / torch.sqrt(v + eps)
def _scatter_add(tgt, idx, src, axis=0):
    return tgt.clone().index_add_(axis, idx, src)
def _segment_sum(src, seg, n):
    out = torch.zeros((n,) + src.shape[1:], dtype=src.dtype)
    return out.index_add_(0, seg, src)
def _pad(x, pw):
    flat = tuple(v for pair in reversed(pw) for v in pair)
    return torch.nn.functional.pad(x, flat)

kernel_name = 'gated_mix__mha_block__softmax_full_mha__prompt'

def setup_inputs():

    _w = (lambda a: (lambda t: t.to(torch.bfloat16) if t.is_floating_point() else t)(torch.as_tensor(a)))
    def _A_setup():
        B, S, D, H = 1, 2048, 1024, 32
        return {
            "x": _w((lambda *s: torch.randn(*s, dtype=torch.bfloat16) * 0.05)(B, S, D)),
            "wqkv": _w((lambda *s: torch.randn(*s, dtype=torch.bfloat16) * 0.8)(D, 3 * D)),
            "wo": _w((lambda *s: torch.randn(*s, dtype=torch.bfloat16) * 0.05)(D, D)),
        }
    _A_in = _A_setup()

    def _B_setup():
        B, S, D = 1, 2048, 1024
        return {
            "x": _w((lambda *s: torch.randn(*s, dtype=torch.bfloat16) * 0.05)(B, S, D)),
            "wqkv": _w((lambda *s: torch.randn(*s, dtype=torch.bfloat16) * 0.8)(D, 3 * D)),
            "wo": _w((lambda *s: torch.randn(*s, dtype=torch.bfloat16) * 0.05)(D, D)),
        }
    _B_in = _B_setup()

    return {
        "A_x": _A_in["x"],
        "A_wqkv": _A_in["wqkv"],
        "A_wo": _A_in["wo"],
        "B_x": _B_in["x"],
        "B_wqkv": _B_in["wqkv"],
        "B_wo": _B_in["wo"],
        "gate_w": _w((lambda *s: torch.randn(*s, dtype=torch.bfloat16) * 0.05)(1024) * 16.0),
    }

def reference(A_x, A_wqkv, A_wo, B_x, B_wqkv, B_wo, gate_w):
    def _A_ref(x, wqkv, wo):
        B, S, D = x.shape
        H = 32
        Dh = D // H
        qkv = (lambda x, *d: x.permute(*d))((x @ wqkv).reshape(B, S, 3, H, Dh), 2, 0, 3, 1, 4)
        q, k, v = qkv[0], qkv[1], qkv[2]
        scores = torch.einsum("bhqd,bhkd->bhqk", q, k) * (Dh ** -0.5)
        p = _softmax(scores, axis=-1)
        o = torch.einsum("bhqk,bhkd->bhqd", p, v)
        return (lambda x, *d: x.permute(*d))(o, 0, 2, 1, 3).reshape(B, S, D) @ wo

    def _B_ref(x, wqkv, wo):
        B, S, D = x.shape
        H = 32; Dh = D // H
        qkv = (lambda x, *d: x.permute(*d))((x @ wqkv).reshape(B, S, 3, H, Dh), 2, 0, 3, 1, 4)
        q, k, v = qkv[0], qkv[1], qkv[2]
        scale = Dh ** -0.5
        scores = torch.einsum("bhqd,bhkd->bhqk", q, k) * scale
        p = _softmax(scores, axis=-1)
        o = torch.einsum("bhqk,bhkd->bhqd", p, v)
        return (lambda x, *d: x.permute(*d))(o, 0, 2, 1, 3).reshape(B, S, D) @ wo

    x = A_x
    g = _sigmoid((x * gate_w).sum(-1, keepdims=True))
    a = _A_ref(x, A_wqkv, A_wo)
    b = _B_ref(x, B_wqkv, B_wo)
    return g * a + (1 - g) * b
```

```python
import re

class Asm:
    def __init__(self):
        self.lines = []
    def __call__(self, s):
        for l in s.strip("\n").split("\n"):
            self.lines.append(l)
    def label(self, n):
        self.lines.append(n + ":")
    def text(self):
        out = []
        for l in self.lines:
            t = l.strip()
            if t.endswith(":") or t.startswith(".") or t.startswith(";") or not t:
                out.append(t)
            else:
                out.append("    " + t)
        return "\n".join(out) + "\n"

REG_RE = re.compile(r'^(-|\|)?(abs\()?([vsa])(\d+|\[(\d+):(\d+)\])\)?\|?$')
def parse_reg(tok):
    tok = tok.strip()
    if tok in ("vcc",): return {("s", "vcc_lo"), ("s", "vcc_hi")}
    if tok in ("vcc_lo", "vcc_hi"): return {("s", tok)}
    if tok == "exec": return {("s", "exec_lo"), ("s", "exec_hi")}
    if tok in ("exec_lo", "exec_hi"): return {("s", tok)}
    if tok == "m0": return {("s", "m0")}
    m = REG_RE.match(tok)
    if not m: return set()
    kind = m.group(3)
    if m.group(5) is not None:
        return {(kind, i) for i in range(int(m.group(5)), int(m.group(6)) + 1)}
    return {(kind, int(m.group(4)))}

TRANS = ("v_exp_f32", "v_log_f32", "v_rcp_f32", "v_rsq_f32", "v_sqrt_f32", "v_sin_f32", "v_cos_f32", "v_exp_f16", "v_rcp_iflag_f32")
class Ins:
    __slots__ = ("text", "op", "cls", "vw", "vr", "sw", "sr", "passes", "mA", "mB", "mC", "mD", "nop", "target",
                 "dpp", "sdwa", "lds_dma", "wide_store", "store_data", "vm", "lg", "wait", "idx", "trans", "smem")
    def __repr__(self): return self.text

def parse(line):
    t = line.split(";")[0].strip()
    if not t or t.startswith(".") : return None
    if t.endswith(":"): return ("label", t[:-1])
    parts = t.split(None, 1)
    op = parts[0]
    rest = parts[1] if len(parts) > 1 else ""
    ins = Ins(); ins.text = t; ins.op = op
    ins.vw = set(); ins.vr = set(); ins.sw = set(); ins.sr = set(); ins.passes = 0
    ins.mA = ins.mB = ins.mC = ins.mD = None; ins.nop = 1; ins.target = None
    ins.dpp = False; ins.sdwa = False; ins.lds_dma = False; ins.wide_store = False; ins.store_data = set()
    ins.vm = False; ins.lg = False; ins.wait = None; ins.trans = False; ins.smem = False
    ops = [o.strip() for o in rest.split(",")] if rest else []
    mods = []
    if ops:
        last = ops[-1].split()
        if len(last) > 1:
            ops[-1] = last[0]; mods = last[1:]
        elif len(last) == 1 and (":" in last[0] and not last[0].startswith(("v[", "s[", "a[")) and not last[0].startswith("-v[")):
            pass
    def addr(tok):
        for k, n in parse_reg(tok):
            (ins.vr if k in "va" else ins.sr).add((k, n))
    def addw(tok):
        for k, n in parse_reg(tok):
            (ins.vw if k in "va" else ins.sw).add((k, n))
    if op.startswith(("v_mfma", "v_smfmac")):
        ins.cls = "mfma"
        shape = re.search(r"_(\d+)x(\d+)x(\d+)", op)
        M = int(shape.group(1))
        ins.passes = 8 if M == 32 else 4
        ins.mD = parse_reg(ops[0]); ins.mA = parse_reg(ops[1]); ins.mB = parse_reg(ops[2])
        if op.startswith("v_smfmac"):
            ins.mC = set(ins.mD); ins.mB = ins.mB | parse_reg(ops[3])
        else:
            ins.mC = parse_reg(ops[3])
        ins.vw = set(ins.mD); ins.vr = ins.mA | ins.mB | ins.mC
    elif op.startswith("v_"):
        ins.cls = "valu"
        ins.trans = any(op.startswith(x) for x in TRANS)
        ins.dpp = ("_dpp" in op) or any(m.startswith(("row_", "quad_perm", "wave_", "row_bcast")) for m in mods)
        ins.sdwa = "_sdwa" in op
        if op.startswith("v_cmp"):
            addw(ops[0]); [addr(o) for o in ops[1:]]
            if op.startswith("v_cmpx"): addw("exec")
        elif op.startswith(("v_readfirstlane", "v_readlane")):
            addw(ops[0]); [addr(o) for o in ops[1:]]
        elif op.startswith(("v_add_co", "v_sub_co", "v_addc_co", "v_subb_co", "v_subrev_co")):
            addw(ops[0]); addw(ops[1]); [addr(o) for o in ops[2:]]
        elif op.startswith("v_permlane") and "swap" in op:
            addw(ops[0]); addw(ops[1]); addr(ops[0]); addr(ops[1])
        elif op.startswith("v_nop"):
            pass
        else:
            addw(ops[0]); [addr(o) for o in ops[1:]]
            if op.startswith(("v_fmac", "v_dot2c", "v_mac", "v_pk_fmac", "v_writelane")) or "UNUSED_PRESERVE" in t or ins.dpp:
                addr(ops[0])
            if op.startswith("v_cndmask") and len(ops) == 3: addr("vcc")
        addr("exec") if False else None
    elif op.startswith("ds_"):
        ins.cls = "ds"; ins.lg = True
        if op.startswith(("ds_read", "ds_bpermute", "ds_permute", "ds_swizzle")):
            addw(ops[0]); [addr(o) for o in ops[1:]]
        else:
            [addr(o) for o in ops]
    elif op.startswith("buffer_") or op.startswith("global_"):
        ins.cls = "vmem"; ins.vm = True
        if op in ("buffer_inv", "buffer_wbl2"):
            pass
        elif "lds" in mods or op.startswith("global_load_lds"):
            ins.lds_dma = True
            [addr(o) for o in ops]; addr("m0")
        elif "_load" in op:
            addw(ops[0]); [addr(o) for o in ops[1:]]
        elif "_store" in op:
            if op.startswith("buffer_"):
                data = ops[0]
            else:
                data = ops[1]
            [addr(o) for o in ops]
            ins.store_data = parse_reg(data)
            ins.wide_store = op.endswith(("x3", "x4"))
        elif "atomic" in op:
            [addr(o) for o in ops]
            if "sc0" in mods:
                addw(ops[0])
        else:
            raise ValueError("unknown vmem " + t)
    elif op.startswith("s_"):
        ins.cls = "salu"
        if op == "s_nop":
            ins.nop = int(ops[0], 0) + 1; ins.cls = "nop"
        elif op == "s_waitcnt":
            ins.cls = "wait"
            w = {}
            for m in re.finditer(r"(vmcnt|lgkmcnt|expcnt)\((\d+)\)", t): w[m.group(1)] = int(m.group(2))
            ins.wait = w
        elif op in ("s_barrier", "s_endpgm", "s_setprio", "s_sleep"):
            ins.cls = "misc"
        elif op.startswith(("s_branch", "s_cbranch")):
            ins.cls = "branch"; ins.target = ops[0]
            if "vcc" in op: addr("vcc")
            if "exec" in op: addr("exec")
        elif op.startswith(("s_load", "s_buffer_load", "s_memtime", "s_memrealtime")):
            ins.cls = "smem"; ins.lg = True; ins.smem = True
            addw(ops[0]); [addr(o) for o in ops[1:]]
        elif op.startswith(("s_cmp", "s_bitcmp")):
            [addr(o) for o in ops]
        elif op.startswith(("s_and_saveexec", "s_or_saveexec")):
            addw(ops[0]); addr(ops[1]); addw("exec"); addr("exec")
        else:
            addw(ops[0]); [addr(o) for o in ops[1:]]
            if op.startswith(("s_addk", "s_mulk", "s_cmov")): addr(ops[0])
    else:
        raise ValueError("unknown instruction: " + t)
    return ins

def parse_all(text):
    prog = []; labels = {}
    for ln in text.split("\n"):
        p = parse(ln)
        if p is None: continue
        if isinstance(p, tuple):
            labels[p[1]] = len(prog); continue
        p.idx = len(prog)
        prog.append(p)
    return prog, labels

def _need(prod, cons):
    best = (0, "")
    def up(n, why):
        nonlocal best
        if n > best[0]: best = (n, why)
    if prod.cls == "valu":
        if prod.op.startswith("v_dot"):
            if (prod.vw & (cons.vr | cons.vw)) and cons.op != prod.op: up(3, "DOT->other")
            if cons.op == prod.op and len(prod.vw & cons.vr) and not (prod.vw & cons.vw): up(3, "DOT->DOT A/B")
        if cons.cls == "mfma" and (prod.vw & cons.vr): up(2, "VALU->MFMA")
        if cons.cls == "valu":
            if prod.trans and not cons.trans and (prod.vw & cons.vr): up(1, "trans->VALU")
            if prod.trans and cons.trans and (prod.vw & cons.vr): up(1, "trans->trans (conservative)")
            if (prod.sw & cons.sr):
                up(2, "VALU sgpr write->VALU read")
                if cons.op.startswith(("v_readlane", "v_writelane")): up(4, "lane select")
                if cons.op.startswith("v_div_fmas"): up(4, "div_fmas")
            if cons.op.startswith(("v_readfirstlane", "v_readlane")) and (prod.vw & cons.vr): up(1, "VALU->readlane")
            if cons.dpp and (prod.vw & cons.vr): up(2, "VALU->DPP")
            if cons.op.startswith("v_permlane") and (prod.vw & cons.vr): up(2, "VALU->permlane")
            if prod.sdwa and (prod.vw & (cons.vr | cons.vw)): up(1, "SDWA->VALU")
        if cons.cls == "vmem" and (prod.sw & cons.sr): up(5, "VALU sgpr write->VMEM")
    if prod.cls == "mfma":
        p8 = prod.passes == 8
        if cons.cls == "mfma":
            if cons.mC and (prod.mD & cons.mC):
                if prod.mD == cons.mC and prod.passes == cons.passes: pass
                else: up(10 if p8 else 6, "MFMA D->MFMA C overlap")
            if prod.mD & (cons.mA | cons.mB): up(12 if p8 else 8, "MFMA D->MFMA A/B")
            if (prod.mD & cons.mD) and not (cons.mC and prod.mD == cons.mC):
                if not (prod.mD == cons.mD and prod.passes == cons.passes): up(10 if p8 else 6, "MFMA D WAW overlap")
        elif cons.cls == "valu":
            if prod.mD & (cons.vr | cons.vw): up(12 if p8 else 8, "MFMA D->VALU")
            if prod.mC and (prod.mC & cons.vw): up(7 if p8 else 3, "MFMA C WAR VALU")
        elif cons.cls in ("vmem", "ds"):
            if prod.mD & (cons.vr | cons.vw): up(12 if p8 else 8, "MFMA D->mem")
            if prod.mC and (prod.mC & cons.vw): up(7 if p8 else 3, "MFMA C WAR load (conservative)")
    if prod.cls == "salu" and ("s", "m0") in prod.sw and cons.lds_dma: up(1, "M0->LDS DMA")
    if prod.cls == "vmem" and prod.wide_store:
        if cons.cls == "valu" and (prod.store_data & cons.vw): up(2, "store data WAR")
        elif cons.cls == "mfma" and (prod.store_data & cons.vw): up(2, "store data WAR mfma")
    return best

def check_seq(seq, errs, seen):
    W = 24
    for i, c in enumerate(seq):
        dist = 0
        j = i - 1
        while j >= 0 and dist < 21:
            p = seq[j]
            n, why = _need(p, c)
            if n > dist:
                key = (p.idx, c.idx, why)
                if key not in seen:
                    seen.add(key)
                    errs.append(f"HAZARD {why}: need {n} have {dist}\n    prod[{p.idx}]: {p.text}\n    cons[{c.idx}]: {c.text}")
            dist += p.nop
            j -= 1

def trace_paths(prog, labels, start, loops=2, take=None, maxlen=400000):
    take = take or set()
    seq = []; pc = start; cnt = {}
    while pc < len(prog) and len(seq) < maxlen:
        ins = prog[pc]; seq.append(ins)
        if ins.op == "s_endpgm": break
        if ins.cls == "branch":
            tgt = labels[ins.target]
            if ins.op == "s_branch":
                pc = tgt; continue
            if tgt <= pc:
                cnt[pc] = cnt.get(pc, 0) + 1
                if cnt[pc] < loops:
                    pc = tgt; continue
                cnt[pc] = 0
            elif ins.target in take:
                pc = tgt; continue
        pc += 1
    return seq

def check_waits(seq, errs, seen):
    vmq = []; lgq = []
    for ins in seq:
        if ins.cls == "wait":
            if "vmcnt" in ins.wait:
                n = ins.wait["vmcnt"]
                while len(vmq) > n: vmq.pop(0)
            if "lgkmcnt" in ins.wait:
                n = ins.wait["lgkmcnt"]
                if any(x.smem for x in lgq):
                    if n == 0: lgq.clear()
                else:
                    while len(lgq) > n: lgq.pop(0)
            continue
        touched_r = ins.vr | ins.sr
        touched_w = ins.vw | ins.sw
        for q, nm in ((vmq, "vmcnt"), (lgq, "lgkmcnt")):
            for p in q:
                dest = p.vw | p.sw
                if dest & (touched_r | touched_w):
                    key = (p.idx, ins.idx, nm)
                    if key not in seen:
                        seen.add(key)
                        errs.append(f"MISSING WAIT {nm}:\n    load[{p.idx}]: {p.text}\n    use[{ins.idx}]: {ins.text}")
        if ins.vm:
            vmq.append(ins)
            if len(vmq) > 63:
                key = ("vmov", ins.idx)
                if key not in seen:
                    seen.add(key); errs.append(f"vmcnt overflow at [{ins.idx}] {ins.text}")
        if ins.lg:
            lgq.append(ins)
            if len(lgq) > 15 and not any(x.smem for x in lgq):
                key = ("lgov", ins.idx)
                if key not in seen:
                    seen.add(key); errs.append(f"note: lgkmcnt >15 outstanding at [{ins.idx}] {ins.text}")

def check_kernel(text, entry, takes=((),), verbose=True):
    prog, labels = parse_all(text)
    errs = []; seen = set()
    for take in takes:
        seq = trace_paths(prog, labels, labels[entry], loops=3, take=set(take))
        check_seq(seq, errs, seen)
        check_waits(seq, errs, seen)
    vmax = max([n for i in prog for k, n in (i.vw | i.vr) if k == "v"] + [0])
    smax = max([n for i in prog for k, n in (i.sw | i.sr) if k == "s" and isinstance(n, int)] + [0])
    return errs, vmax, smax
```

```python
from asmlib import Asm
NAME = "gated_mix__mha_block__softmax_full_mha__prompt"
KA_X, KA_WA, KA_WOA, KA_BX, KA_WB, KA_WOB, KA_GW, KA_OUT, KA_DBG, KA_WS = 0, 8, 16, 24, 32, 40, 48, 56, 64, 72
WS_QF  = 0
WS_KV  = 8 << 20
WS_OF  = 24 << 20
WS_G   = 32 << 20
WS_SIZE = (32 << 20) + 8192
QSCALE = 1.4426950408889634 * (32 ** -0.5)
import struct
def f32(x): return "0x%08x" % struct.unpack("<I", struct.pack("<f", x))[0]

def srd(a, s, lo, hi, nbytes):
    a(f"s_mov_b32 s{s}, s{lo}")
    a(f"s_mov_b32 s{s+1}, s{hi}")
    a(f"s_mov_b32 s{s+2}, {nbytes}")
    a(f"s_mov_b32 s{s+3}, 0x20000")

def kernel_head(a, name):
    a(".text")
    a(f".globl {name}")
    a(".p2align 8")
    a(f".type {name},@function")
    a.label(name)

def kernel_desc(name, nvgpr, nsgpr=96):
    acc = (nvgpr + 3)//4*4
    return f""".section .rodata,"a"
.p2align 6
.amdhsa_kernel {name}
  .amdhsa_next_free_vgpr {nvgpr}
  .amdhsa_next_free_sgpr {nsgpr}
  .amdhsa_accum_offset {acc}
  .amdhsa_group_segment_fixed_size 0
  .amdhsa_kernarg_size 80
  .amdhsa_user_sgpr_count 2
  .amdhsa_user_sgpr_kernarg_segment_ptr 1
  .amdhsa_system_sgpr_workgroup_id_x 1
.end_amdhsa_kernel
"""
def vr(a, n=1): return f"v{a}" if n == 1 else f"v[{a}:{a+n-1}]"
def sr(a, n=1): return f"s{a}" if n == 1 else f"s[{a}:{a+n-1}]"

WS_T = 40 << 20
class Prof:
    def __init__(self, on, kidx):
        self.on = on; self.kidx = kidx; self.n = 0
    def stamp(self, a, wait=True):
        if not self.on: return
        i = self.n; self.n += 1
        assert i < 14
        a(f"{'s_memtime' if self.on == 'cyc' else 's_memrealtime'} s[{64+2*i}:{65+2*i}]")
        if wait: a("s_waitcnt lgkmcnt(0)")
    def cyc(self, a):
        if not self.on: return
        i = self.n; self.n += 1
        a(f"s_memtime s[{64+2*i}:{65+2*i}]")
        a("s_waitcnt lgkmcnt(0)")
    def flush(self, a, swave, wslo, wshi, name):
        if not self.on: return
        a("s_waitcnt lgkmcnt(0)")
        a(f"s_cmp_lg_u32 s{swave}, 0")
        a(f"s_cbranch_scc1 {name}_noprof")
        a(f"s_mov_b32 s92, s{wslo}")
        a(f"s_mov_b32 s93, s{wshi}")
        a(f"s_mov_b32 s94, {64 << 20}")
        a(f"s_mov_b32 s95, 0x20000")
        a(f"s_lshl_b32 s63, s2, 7")
        a(f"s_add_u32 s63, s63, {WS_T + self.kidx*512*128}")
        a("v_mov_b32 v1, 0")
        for i in range(self.n):
            a(f"v_mov_b32 v2, s{64+2*i}")
            a(f"buffer_store_dword v2, v1, s[92:95], s63 offen offset:{4*i}")
        a.label(f"{name}_noprof")
```

```python
from common import *

def gen_k1(name, R=20, prof=False):
    a = Asm()
    RB = R*8192
    kernel_head(a, name)
    P = Prof(prof, 0)
    S_X, S_W, S_WS, S_GW = 4, 8, 12, 16
    sW_, sWM, sHH, sG, sE, sB, sT = 20, 21, 22, 23, 24, 25, 26
    sW1024, sXK, sWK, sXB, sT0, sT1, sWM8 = 27, 28, 29, 30, 31, 32, 33
    vLane, vT0, vT1, vT2, vT3 = 1, 2, 3, 4, 5
    vOffX, vOffW = 10, 11
    vAX = 12
    vAW = 16
    vCX = 17
    vCW = 21
    FR = [24, 44]
    ACC = 64
    vG = 160
    def accreg(y, tb): return ACC + (y*2 + tb)*16

    a(f"s_cmp_ge_u32 s2, 256")
    a(f"s_cbranch_scc1 {name}_end")
    P.stamp(a, wait=False)
    a(f"s_load_dwordx2 s[40:41], s[0:1], {KA_X}")
    a(f"s_load_dwordx2 s[42:43], s[0:1], {KA_WA}")
    a(f"s_load_dwordx2 s[44:45], s[0:1], {KA_WB}")
    a(f"s_load_dwordx2 s[46:47], s[0:1], {KA_GW}")
    a(f"s_load_dwordx2 s[48:49], s[0:1], {KA_WS}")
    a(f"v_lshrrev_b32 v{vT0}, 6, v0")
    a(f"v_and_b32 v{vLane}, 63, v0")
    a(f"v_readfirstlane_b32 s{sW_}, v{vT0}")
    a(f"s_and_b32 s{sG}, s2, 31")
    a(f"s_lshr_b32 s{sE}, s2, 5")
    a(f"s_lshr_b32 s{sB}, s{sG}, 4")
    a(f"s_and_b32 s{sT}, s{sG}, 15")
    a(f"s_and_b32 s{sWM}, s{sW_}, 3")
    a(f"s_lshr_b32 s{sHH}, s{sW_}, 2")
    a(f"s_lshl_b32 s{sW1024}, s{sW_}, 10")
    a(f"s_lshl_b32 s{sWM8}, s{sWM}, 13")
    a("s_waitcnt lgkmcnt(0)")
    srd(a, S_X, 40, 41, 2048*1024*2)
    a(f"s_cmp_eq_u32 s{sB}, 0")
    a(f"s_cselect_b32 s{S_W}, s42, s44")
    a(f"s_cselect_b32 s{S_W+1}, s43, s45")
    a(f"s_mov_b32 s{S_W+2}, {1024*3072*2}")
    a(f"s_mov_b32 s{S_W+3}, 0x20000")
    srd(a, S_WS, 48, 49, WS_SIZE)
    srd(a, S_GW, 46, 47, 2048)
    a(f"s_lshl_b32 s{sT0}, s{sE}, 5")
    a(f"s_add_u32 s{sT0}, s{sT0}, s{sG}")
    a(f"s_lshl_b32 s{sT0}, s{sT0}, 3")
    a(f"s_add_u32 s{sT0}, s{sT0}, s{sW_}")
    a(f"s_lshl_b32 s34, s{sT0}, 2")
    a(f"s_lshl_b32 s{sT0}, s{sT0}, 11")
    a(f"v_lshlrev_b32 v{vT1}, 5, v{vLane}")
    a(f"buffer_load_dwordx4 v[{vG}:{vG+3}], v{vT1}, s[{S_X}:{S_X+3}], s{sT0} offen")
    a(f"buffer_load_dwordx4 v[{vG+4}:{vG+7}], v{vT1}, s[{S_X}:{S_X+3}], s{sT0} offen offset:16")
    a(f"buffer_load_dwordx4 v[{vG+8}:{vG+11}], v{vT1}, s[{S_GW}:{S_GW+3}], 0 offen")
    a(f"buffer_load_dwordx4 v[{vG+12}:{vG+15}], v{vT1}, s[{S_GW}:{S_GW+3}], 0 offen offset:16")
    a(f"v_lshrrev_b32 v{vT0}, 3, v{vLane}")
    a(f"s_lshl_b32 s{sT0}, s{sW_}, 3")
    a(f"v_add_u32 v{vT0}, s{sT0}, v{vT0}")
    a(f"v_lshrrev_b32 v{vT1}, 1, v{vT0}")
    a(f"v_and_b32 v{vT1}, 7, v{vT1}")
    a(f"v_and_b32 v{vT2}, 7, v{vLane}")
    a(f"v_xor_b32 v{vT1}, v{vT1}, v{vT2}")
    a(f"v_lshlrev_b32 v{vT1}, 4, v{vT1}")
    a(f"v_lshl_add_u32 v{vOffX}, v{vT0}, 11, v{vT1}")
    a(f"v_lshrrev_b32 v{vT1}, 1, v{vT0}")
    a(f"v_and_b32 v{vT1}, 1, v{vT1}")
    a(f"v_lshlrev_b32 v{vT1}, 2, v{vT1}")
    a(f"v_xor_b32 v{vT1}, v{vT1}, v{vT2}")
    a(f"v_lshlrev_b32 v{vT1}, 4, v{vT1}")
    a(f"v_mul_u32_u24 v{vT0}, 6144, v{vT0}")
    a(f"v_add_u32 v{vOffW}, v{vT0}, v{vT1}")
    a(f"s_lshl_b32 s{sXK}, s{sE}, 19")
    a(f"s_lshl_b32 s{sWK}, s{sT}, 7")
    a(f"v_and_b32 v{vT0}, 31, v{vLane}")
    a(f"v_lshrrev_b32 v{vT1}, 5, v{vLane}")
    a(f"v_lshrrev_b32 v{vT2}, 1, v{vT0}")
    a(f"v_and_b32 v{vT2}, 7, v{vT2}")
    a(f"v_xor_b32 v{vT1}, v{vT1}, v{vT2}")
    a(f"v_lshlrev_b32 v{vT1}, 4, v{vT1}")
    a(f"v_lshl_add_u32 v{vAX}, v{vT0}, 7, v{vT1}")
    for s in range(1, 4):
        a(f"v_xor_b32 v{vAX+s}, {32*s}, v{vAX}")
    a(f"v_and_b32 v{vT0}, 15, v{vLane}")
    a(f"v_lshrrev_b32 v{vT1}, 5, v{vLane}")
    a(f"v_lshlrev_b32 v{vT1}, 3, v{vT1}")
    a(f"v_lshrrev_b32 v{vT2}, 2, v{vT0}")
    a(f"v_add_u32 v{vT1}, v{vT1}, v{vT2}")
    a(f"v_lshlrev_b32 v{vAW}, 7, v{vT1}")
    a(f"v_lshrrev_b32 v{vT1}, 3, v{vT0}")
    a(f"v_xor_b32 v{vT1}, s{sHH}, v{vT1}")
    a(f"v_lshl_add_u32 v{vAW}, v{vT1}, 6, v{vAW}")
    a(f"v_bfe_u32 v{vT1}, v{vLane}, 4, 1")
    a(f"v_lshl_add_u32 v{vAW}, v{vT1}, 5, v{vAW}")
    a(f"v_and_b32 v{vT1}, 3, v{vT0}")
    a(f"v_lshl_add_u32 v{vAW}, v{vT1}, 3, v{vAW}")

    def dma(u):
        st, r = divmod(u, 7)
        slot = (u % R)*8192
        a(f"s_add_u32 m0, s{sW1024}, {slot}")
        if r < 4:
            a(f"s_add_u32 s{sT0}, s{sXK}, {r*131072 + st*128}")
            a(f"buffer_load_dwordx4 v{vOffX}, s[{S_X}:{S_X+3}], s{sT0} offen lds")
        else:
            a(f"s_add_u32 s{sT0}, s{sWK}, {st*64*6144 + (r-4)*2048}")
            a(f"buffer_load_dwordx4 v{vOffW}, s[{S_W}:{S_W+3}], s{sT0} offen lds")
    NU = 16*7
    for u in range(R-7): dma(u)
    for i in range(96): a(f"v_mov_b32 v{ACC+i}, 0")
    a(f"s_waitcnt vmcnt({R-7})")
    a(f"v_mov_b32 v{vG+16}, 0")
    for i in range(8):
        a(f"v_dot2c_f32_bf16 v{vG+16}, v{vG+i}, v{vG+8+i}")
    a("s_nop 3")
    for sh in (1, 2, 4, 8):
        a(f"v_add_f32_dpp v{vG+16}, v{vG+16}, v{vG+16} row_shr:{sh} row_mask:0xf bank_mask:0xf")
        a("s_nop 1")
    a(f"v_add_f32_dpp v{vG+16}, v{vG+16}, v{vG+16} row_bcast:15 row_mask:0xa bank_mask:0xf")
    a("s_nop 1")
    a(f"v_add_f32_dpp v{vG+16}, v{vG+16}, v{vG+16} row_bcast:31 row_mask:0xc bank_mask:0xf")
    a(f"v_cvt_pk_bf16_f32 v{vG+17}, v{vG+16}, v{vG+16}")
    a(f"v_lshlrev_b32 v{vG+17}, 16, v{vG+17}")
    a(f"v_mul_f32 v{vG+17}, {f32(-1.4426950408889634)}, v{vG+17}")
    a(f"v_exp_f32 v{vG+17}, v{vG+17}")
    a("s_nop 0")
    a(f"v_add_f32 v{vG+17}, 1.0, v{vG+17}")
    a(f"v_rcp_f32 v{vG+17}, v{vG+17}")
    a("s_nop 0")
    a(f"v_cvt_pk_bf16_f32 v{vG+17}, v{vG+17}, v{vG+17}")
    a(f"v_lshlrev_b32 v{vG+17}, 16, v{vG+17}")

    def reads(fs, s):
        f = FR[fs]
        r = []
        for tb in range(2):
            r.append(f"ds_read_b128 v[{f+4*tb}:{f+4*tb+3}], v{vCX+s} offset:{tb*4096}")
        for y in range(3):
            for u in range(2):
                d = f + 8 + 4*y + 2*u
                r.append(f"ds_read_b64_tr_b16 v[{d}:{d+1}], v{vCW+y} offset:{s*2048+u*512}")
        return r
    def mfmas(fs):
        f = FR[fs]
        m = []
        for y in range(3):
            for tb in range(2):
                x = f"v[{f+4*tb}:{f+4*tb+3}]"; w = f"v[{f+8+4*y}:{f+8+4*y+3}]"
                d = accreg(y, tb); dd = f"v[{d}:{d+15}]"
                if y < 2: m.append(f"v_mfma_f32_32x32x16_bf16 {dd}, {w}, {x}, {dd}")
                else:     m.append(f"v_mfma_f32_32x32x16_bf16 {dd}, {x}, {w}, {dd}")
        return m
    def step(ms, rs, extra):
        rs = list(rs); extra = list(extra)
        for k, m in enumerate(ms):
            a(m)
            if k < 3:
                for _ in range(3 if k < 2 else 2):
                    if rs: a(rs.pop(0))
            elif extra:
                extra.pop(0)()
        for r in rs: a(r)
        for e in extra: e()

    for i in range(16):
        issued = min(7*(i-1) + R, NU)
        a(f"s_waitcnt vmcnt({max(issued - 7*(i+1), 0)})" + (" lgkmcnt(0)" if i > 0 else ""))
        a("s_barrier")
        if i in (0, 1, 8): P.stamp(a)
        base = (7*i) % R
        a(f"s_add_u32 s{sXB}, s{sWM8}, {base*8192}")
        a(f"s_cmp_ge_u32 s{sXB}, {RB}")
        a(f"s_cselect_b32 s{sT1}, {RB}, 0")
        a(f"s_sub_u32 s{sXB}, s{sXB}, s{sT1}")
        for s in range(4): a(f"v_add_u32 v{vCX+s}, s{sXB}, v{vAX+s}")
        for y in range(3): a(f"v_add_u32 v{vCW+y}, {((7*i+4+y) % R)*8192}, v{vAW}")
        todo = [u for u in range(7*(i-1)+R, 7*i+R) if u < NU]
        dmas = [(lambda u=u: dma(u)) for u in todo]
        if i == 0:
            for r in reads(0, 0): a(r)
            for d in dmas[:2]: d()
            dmas = dmas[2:]
        else:
            step(mfmas(1), reads(0, 0), dmas[:2]); dmas = dmas[2:]
        a("s_waitcnt lgkmcnt(0)")
        step(mfmas(0), reads(1, 1), dmas[:2]); dmas = dmas[2:]
        a("s_waitcnt lgkmcnt(0)")
        step(mfmas(1), reads(0, 2), dmas[:2]); dmas = dmas[2:]
        a("s_waitcnt lgkmcnt(0)")
        step(mfmas(0), reads(1, 3), dmas)
    a("s_waitcnt lgkmcnt(0)")
    for m in mfmas(1): a(m)
    P.stamp(a)
    a(f"s_lshl_b32 s{sT0}, s{sB}, 5")
    a(f"s_lshl_b32 s{sT1}, s{sT}, 1")
    a(f"s_add_u32 s{sT0}, s{sT0}, s{sT1}")
    a(f"s_add_u32 s{sT0}, s{sT0}, s{sHH}")
    a(f"s_lshl_b32 s{sT0}, s{sT0}, 6")
    a(f"s_lshl_b32 s{sT1}, s{sE}, 3")
    a(f"s_add_u32 s{sT0}, s{sT0}, s{sT1}")
    a(f"s_lshl_b32 s{sT1}, s{sWM}, 1")
    a(f"s_add_u32 s{sT0}, s{sT0}, s{sT1}")
    a(f"s_lshl_b32 s36, s{sT0}, 11")
    a(f"s_lshl_b32 s37, s{sT0}, 12")
    a(f"s_add_u32 s37, s37, {WS_KV}")
    a(f"v_lshlrev_b32 v{vT0}, 4, v{vLane}")
    a(f"s_mov_b32 s38, {f32(QSCALE)}")
    a("s_nop 4")
    a(f"v_mov_b32 v{vT1}, s34")
    a(f"v_cmp_eq_u32 vcc, 63, v{vLane}")
    a(f"s_and_saveexec_b64 s[50:51], vcc")
    a(f"v_add_u32 v{vT1}, {WS_G}, v{vT1}")
    a(f"buffer_store_dword v{vG+17}, v{vT1}, s[{S_WS}:{S_WS+3}], 0 offen")
    a(f"s_mov_b64 exec, s[50:51]")
    PK = 24
    tiles = [(y, tb) for y in range(3) for tb in range(2)]
    for n, (y, tb) in enumerate(tiles):
        d = accreg(y, tb)
        p = PK + (n % 4)*8
        if y == 0:
            for r in range(16): a(f"v_mul_f32 v{d+r}, s38, v{d+r}")
        for r in range(8): a(f"v_cvt_pk_bf16_f32 v{p+r}, v{d+2*r}, v{d+2*r+1}")
        if y == 0:
            a(f"s_add_u32 s{sT0}, s36, {tb*2048}")
            off = 0
        else:
            a(f"s_add_u32 s{sT0}, s37, {tb*4096}")
            off = 0 if y == 1 else 2048
        a(f"buffer_store_dwordx4 v[{p}:{p+3}], v{vT0}, s[{S_WS}:{S_WS+3}], s{sT0} offen offset:{off}")
        a(f"buffer_store_dwordx4 v[{p+4}:{p+7}], v{vT0}, s[{S_WS}:{S_WS+3}], s{sT0} offen offset:{off+1024}")
        if n == 3: a("s_nop 1")
    if prof:
        a("s_waitcnt vmcnt(0)")
        P.stamp(a)
    P.flush(a, sW_, 48, 49, name)
    a.label(f"{name}_end")
    a("s_endpgm")
    return a.text(), 180, RB
```

```python
from common import *

def gen_k2(name, prof=False, kidx=1):
    a = Asm()
    kernel_head(a, name)
    P = Prof(prof, kidx)
    RS = 4
    STB = 16384
    S_WS = 4
    sW_, sWM, sHH, sG, sE, sB, sT, sBH = 20, 21, 22, 23, 24, 25, 26, 27
    sT0, sT1, sKV, sLW, sCnt, sFB, sSlotR, sSlotD = 28, 29, 30, 31, 32, 33, 34, 35
    vLane, vT0, vT1, vT2 = 1, 2, 3, 4
    vOff = 5
    vRd = 6
    vRd2 = 7
    Q = {"A": 8, "B": 16}
    KF = [24, 32]
    VF = [40, 48]
    PP = {"A": 56, "B": 64}
    L = {"A": 72, "B": 76}
    ONES = 80
    SS = {"A": 96, "B": 112}
    O = {"A": 128, "B": 144}
    CM = {"A": 160, "B": 176}
    TMP = 192
    NV = 208

    a("s_cmp_ge_u32 s2, 256")
    a(f"s_cbranch_scc1 {name}_end")
    P.stamp(a, wait=False)
    a(f"s_load_dwordx2 s[48:49], s[0:1], {KA_WS}")
    a(f"v_lshrrev_b32 v{vT0}, 6, v0")
    a(f"v_and_b32 v{vLane}, 63, v0")
    a(f"v_readfirstlane_b32 s{sW_}, v{vT0}")
    a(f"s_and_b32 s{sG}, s2, 31")
    a(f"s_lshr_b32 s{sE}, s2, 5")
    a(f"s_lshr_b32 s{sB}, s{sG}, 4")
    a(f"s_and_b32 s{sT}, s{sG}, 15")
    a(f"s_and_b32 s{sWM}, s{sW_}, 3")
    a(f"s_lshr_b32 s{sHH}, s{sW_}, 2")
    a(f"s_lshl_b32 s{sBH}, s{sB}, 5")
    a(f"s_lshl_b32 s{sT0}, s{sT}, 1")
    a(f"s_add_u32 s{sBH}, s{sBH}, s{sT0}")
    a(f"s_add_u32 s{sBH}, s{sBH}, s{sHH}")
    a(f"v_lshlrev_b32 v{vOff}, 4, v{vLane}")
    a("s_waitcnt lgkmcnt(0)")
    srd(a, S_WS, 48, 49, WS_SIZE)
    a(f"s_lshl_b32 s{sKV}, s{sBH}, 18")
    a(f"s_lshl_b32 s{sT0}, s{sWM}, 11")
    a(f"s_add_u32 s{sKV}, s{sKV}, s{sT0}")
    a(f"s_add_u32 s{sKV}, s{sKV}, {WS_KV}")
    a(f"s_lshl_b32 s{sLW}, s{sHH}, 13")
    a(f"v_add_u32 v{vRd}, s{sLW}, v{vOff}")
    a(f"s_add_u32 s{sLW}, s{sLW}, s{sT0}")

    def dma_stage(src_off_sreg, slot_reg_or_const):
        for p in range(2):
            if isinstance(slot_reg_or_const, int):
                a(f"s_add_u32 m0, s{sLW}, {slot_reg_or_const + p*1024}")
            else:
                a(f"s_add_u32 m0, {slot_reg_or_const}, {p*1024}")
            a(f"s_add_u32 s{sT1}, s{src_off_sreg}, {p*1024}")
            a(f"buffer_load_dwordx4 v{vOff}, s[{S_WS}:{S_WS+3}], s{sT1} offen lds")

    a(f"s_lshl_b32 s{sT0}, s{sBH}, 6")
    a(f"s_lshl_b32 s{sT1}, s{sE}, 3")
    a(f"s_add_u32 s{sT0}, s{sT0}, s{sT1}")
    a(f"s_lshl_b32 s{sT1}, s{sWM}, 1")
    a(f"s_add_u32 s{sT0}, s{sT0}, s{sT1}")
    a(f"s_lshl_b32 s36, s{sT0}, 11")
    for qi, qb in enumerate("AB"):
        for m in range(2):
            a(f"buffer_load_dwordx4 v[{Q[qb]+4*m}:{Q[qb]+4*m+3}], v{vOff}, s[{S_WS}:{S_WS+3}], s36 offen offset:{qi*2048+m*1024}")

    a(f"v_lshrrev_b32 v{vT0}, 2, v{vLane}")
    a(f"v_lshrrev_b32 v{vT1}, 4, v{vLane}")
    a(f"v_xor_b32 v{vT0}, v{vT0}, v{vT1}")
    a(f"v_and_b32 v{vT0}, 1, v{vT0}")
    a(f"v_cmp_eq_u32 vcc, 0, v{vT0}")
    a(f"v_mov_b32 v{vT1}, 0x3f803f80")
    a("s_nop 0")
    a(f"v_cndmask_b32 v{ONES}, 0, v{vT1}, vcc")
    for i in range(1, 4): a(f"v_mov_b32 v{ONES+i}, v{ONES}")
    a(f"s_mov_b32 s{sFB}, 0")
    a(f"v_mov_b32 v{vT0}, {RS*STB}")
    a(f"v_mov_b32 v{vT1}, 0")
    a(f"ds_write_b32 v{vT0}, v{vT1}")
    a("s_waitcnt lgkmcnt(0)")

    a.label(f"{name}_restart")
    for st in range(RS-1):
        a(f"s_add_u32 s{sT0}, s{sKV}, {st*8192}")
        dma_stage(sT0, st*STB)
    for qb in "AB":
        for i in range(16): a(f"v_mov_b32 v{O[qb]+i}, 0")
        for i in range(4): a(f"v_mov_b32 v{L[qb]+i}, 0")
    a(f"s_waitcnt vmcnt({2*(RS-2)})")
    a("s_barrier")
    P.stamp(a)

    def rdK(fs, blk_in_stage, addr): return [f"ds_read_b128 v[{KF[fs]+4*m}:{KF[fs]+4*m+3}], v{addr} offset:{blk_in_stage*4096 + m*1024}" for m in range(2)]
    def rdV(fs, blk_in_stage, addr): return [f"ds_read_b128 v[{VF[fs]+4*m}:{VF[fs]+4*m+3}], v{addr} offset:{blk_in_stage*4096 + 2048 + m*1024}" for m in range(2)]
    def QK(qb, fs, c0):
        s = SS[qb]
        return [f"v_mfma_f32_32x32x16_bf16 v[{s}:{s+15}], v[{KF[fs]}:{KF[fs]+3}], v[{Q[qb]}:{Q[qb]+3}], {c0}",
                f"v_mfma_f32_32x32x16_bf16 v[{s}:{s+15}], v[{KF[fs]+4}:{KF[fs]+7}], v[{Q[qb]+4}:{Q[qb]+7}], v[{s}:{s+15}]"]
    def PV(qb, fs):
        o = O[qb]; p = PP[qb]
        return [f"v_mfma_f32_32x32x16_bf16 v[{o}:{o+15}], v[{VF[fs]}:{VF[fs]+3}], v[{p}:{p+3}], v[{o}:{o+15}]",
                f"v_mfma_f32_32x32x16_bf16 v[{o}:{o+15}], v[{VF[fs]+4}:{VF[fs]+7}], v[{p+4}:{p+7}], v[{o}:{o+15}]"]
    def SUM(qb):
        l = L[qb]; p = PP[qb]
        return [f"v_mfma_f32_16x16x32_bf16 v[{l}:{l+3}], v[{ONES}:{ONES+3}], v[{p}:{p+3}], v[{l}:{l+3}]",
                f"v_mfma_f32_16x16x32_bf16 v[{l}:{l+3}], v[{ONES}:{ONES+3}], v[{p+4}:{p+7}], v[{l}:{l+3}]"]
    def EXP(qb): s = SS[qb]; return [f"v_exp_f32 v{s+i}, v{s+i}" for i in range(16)]
    def CVT(qb): s = SS[qb]; p = PP[qb]; return [f"v_cvt_pk_bf16_f32 v{p+i}, v{s+2*i}, v{s+2*i+1}" for i in range(8)]
    cm = lambda qb: f"v[{CM[qb]}:{CM[qb]+15}]"

    for r in rdK(0, 0, vRd): a(r)
    a("s_waitcnt vmcnt(4) lgkmcnt(0)" if False else "s_waitcnt lgkmcnt(0)")
    a(f"s_cmp_eq_u32 s{sFB}, 1")
    a(f"s_cbranch_scc1 {name}_havemax")
    for qb in "AB":
        for m in QK(qb, 0, "0"): a(m)
    a("s_nop 7"); a("s_nop 3")
    for qb in "AB":
        s = SS[qb]
        a(f"v_max3_f32 v{TMP}, v{s}, v{s+1}, v{s+2}")
        for i in range(3, 15, 2): a(f"v_max3_f32 v{TMP}, v{TMP}, v{s+i}, v{s+i+1}")
        a(f"v_max_f32 v{TMP}, v{TMP}, v{s+15}")
        a(f"v_mov_b32 v{TMP+1}, v{TMP}")
        a("s_nop 1")
        a(f"v_permlane32_swap_b32 v{TMP}, v{TMP+1}")
        a("s_nop 0")
        a(f"v_max_f32 v{TMP}, v{TMP}, v{TMP+1}")
        for i in range(16): a(f"v_sub_f32 v{CM[qb]+i}, 0, v{TMP}")
    a.label(f"{name}_havemax")

    def half(X, Y, qk, pv, valu_on, extra=()):
        e = EXP(Y) if valu_on else []; c = CVT(Y) if valu_on else []
        mq = QK(X, qk, cm(X)) if qk is not None else []
        mp = PV(X, pv) if pv is not None else []
        ms = SUM(X) if pv is not None else []
        extra = list(extra)
        def em(l, i):
            if i < len(l): a(l[i])
        def ex():
            if extra: a(extra.pop(0))
        em(e,0); em(e,1); em(mq,0); em(e,2); em(e,3); em(c,0); ex(); em(e,4); em(e,5); em(c,1)
        em(mq,1); em(e,6); em(e,7); em(c,2); ex(); em(e,8); em(e,9); em(c,3)
        em(mp,0); em(e,10); em(e,11); em(c,4); ex()
        em(ms,0); em(e,12); em(e,13); em(c,5); ex()
        em(mp,1); em(e,14); em(e,15); em(c,6)
        em(ms,1); em(c,7)
        while extra: ex()
        if not valu_on:
            a("s_nop 7"); a("s_nop 3")
        extra = []
        while extra: ex()

    def blockstep(n_par, first, last, rd_k, rd_v, pre=()):
        ks = n_par; vs = 1 - n_par
        half("A", "B", None if last else ks, None if first else vs, not first, extra=list(pre) + rd_k + rd_v)
        half("B", "A", None if last else ks, None if first else vs, not last)

    a("s_waitcnt lgkmcnt(0)")
    blockstep(0, True, False, rdK(1, 1, vRd), rdV(0, 0, vRd))
    a(f"s_mov_b32 s{sCnt}, 0")
    a(f"s_mov_b32 s{sSlotR}, 0")
    a(f"s_add_u32 s{sSlotD}, s{sLW}, {(RS-1)*STB}")
    a(f"s_add_u32 s37, s{sKV}, {(RS-1)*8192}")
    a.label(f"{name}_loop")
    a(f"s_waitcnt vmcnt(2) lgkmcnt(0)")
    a(f"s_cmp_lt_u32 s{sCnt}, 30")
    a(f"s_cbranch_scc1 {name}_w2")
    a(f"s_waitcnt vmcnt(0)")
    a.label(f"{name}_w2")
    a("s_barrier")
    a(f"s_add_u32 s{sT0}, s{sSlotR}, {STB}")
    a(f"s_and_b32 s{sT0}, s{sT0}, {RS*STB-1}")
    a(f"s_sub_u32 s{sT1}, s{sT0}, s{sSlotR}")
    a(f"v_add_u32 v{vRd2}, s{sT1}, v{vRd}")
    a(f"s_mov_b32 s{sSlotR}, s{sT0}")
    a(f"s_cmp_ge_u32 s{sCnt}, {32-(RS-1)}")
    a(f"s_cbranch_scc1 {name}_nodma")
    dma_stage(37, f"s{sSlotD}")
    a.label(f"{name}_nodma")
    a(f"s_add_u32 s37, s37, 8192")
    a(f"s_sub_u32 s{sSlotD}, s{sSlotD}, s{sLW}")
    a(f"s_add_u32 s{sSlotD}, s{sSlotD}, {STB}")
    a(f"s_and_b32 s{sSlotD}, s{sSlotD}, {RS*STB-1}")
    a(f"s_add_u32 s{sSlotD}, s{sSlotD}, s{sLW}")
    blockstep(1, False, False, rdK(0, 0, vRd2), rdV(1, 1, vRd))
    a(f"v_mov_b32 v{vRd}, v{vRd2}")
    a("s_waitcnt lgkmcnt(0)")
    blockstep(0, False, False, rdK(1, 1, vRd), rdV(0, 0, vRd))
    a(f"s_add_u32 s{sCnt}, s{sCnt}, 1")
    a(f"s_cmp_lt_u32 s{sCnt}, 31")
    a(f"s_cbranch_scc1 {name}_loop")
    a("s_waitcnt lgkmcnt(0)")
    blockstep(1, False, False, [], rdV(1, 1, vRd))
    a("s_waitcnt lgkmcnt(0)")
    half("A", "B", None, 1, True)
    a("s_nop 1")
    half("B", "A", None, 1, False)
    P.stamp(a)
    a("s_nop 7")
    a(f"s_cmp_eq_u32 s{sFB}, 1")
    a(f"s_cbranch_scc1 {name}_final")
    a(f"s_mov_b32 s38, {f32(2.0**40)}")
    a(f"v_cmp_nle_f32 vcc, v{L['A']}, s38")
    a(f"v_cmp_nle_f32 s[40:41], v{L['B']}, s38")
    a("s_nop 1")
    a("s_or_b64 vcc, vcc, s[40:41]")
    a(f"s_cmp_lg_u64 vcc, 0")
    a(f"s_cselect_b32 s{sT0}, 1, 0")
    a(f"v_mov_b32 v{vT0}, {RS*STB}")
    a(f"v_mov_b32 v{vT1}, s{sT0}")
    a(f"ds_or_b32 v{vT0}, v{vT1}")
    a("s_waitcnt lgkmcnt(0)")
    a("s_barrier")
    a(f"ds_read_b32 v{vT1}, v{vT0}")
    a("s_waitcnt lgkmcnt(0)")
    a(f"v_readfirstlane_b32 s{sT0}, v{vT1}")
    a("s_nop 3")
    a(f"s_cmp_eq_u32 s{sT0}, 0")
    a(f"s_cbranch_scc1 {name}_final")
    for qb in "AB":
        for i in range(16): a(f"v_mov_b32 v{CM[qb]+i}, 0xff800000")
    a(f"s_mov_b32 s{sCnt}, 0")
    a(f"s_mov_b32 s37, s{sKV}")
    a(f"s_lshl_b32 s{sT0}, s{sWM}, 11")
    a(f"s_sub_u32 s37, s37, s{sT0}")
    a.label(f"{name}_maxloop")
    for m in range(2):
        a(f"buffer_load_dwordx4 v[{KF[0]+4*m}:{KF[0]+4*m+3}], v{vOff}, s[{S_WS}:{S_WS+3}], s37 offen offset:{m*1024}")
    a("s_waitcnt vmcnt(0)")
    for qb in "AB":
        for m in QK(qb, 0, "0"): a(m)
    a("s_nop 7"); a("s_nop 3")
    for qb in "AB":
        for i in range(16): a(f"v_max_f32 v{CM[qb]+i}, v{CM[qb]+i}, v{SS[qb]+i}")
    a(f"s_add_u32 s37, s37, 4096")
    a(f"s_add_u32 s{sCnt}, s{sCnt}, 1")
    a(f"s_cmp_lt_u32 s{sCnt}, 64")
    a(f"s_cbranch_scc1 {name}_maxloop")
    for qb in "AB":
        s = CM[qb]
        a(f"v_max3_f32 v{TMP}, v{s}, v{s+1}, v{s+2}")
        for i in range(3, 15, 2): a(f"v_max3_f32 v{TMP}, v{TMP}, v{s+i}, v{s+i+1}")
        a(f"v_max_f32 v{TMP}, v{TMP}, v{s+15}")
        a(f"v_mov_b32 v{TMP+1}, v{TMP}")
        a("s_nop 1")
        a(f"v_permlane32_swap_b32 v{TMP}, v{TMP+1}")
        a("s_nop 0")
        a(f"v_max_f32 v{TMP}, v{TMP}, v{TMP+1}")
        for i in range(16): a(f"v_sub_f32 v{CM[qb]+i}, 0, v{TMP}")
    a(f"s_mov_b32 s{sFB}, 1")
    a(f"s_lshl_b32 s{sT0}, s{sHH}, 13")
    a(f"v_add_u32 v{vRd}, s{sT0}, v{vOff}")
    a("s_barrier")
    a(f"s_branch {name}_restart")
    a.label(f"{name}_final")
    a(f"s_lshl_b32 s{sT0}, s{sE}, 3")
    a(f"s_lshl_b32 s{sT1}, s{sWM}, 1")
    a(f"s_add_u32 s{sT0}, s{sT0}, s{sT1}")
    a(f"s_lshl_b32 s{sT0}, s{sT0}, 17")
    a(f"s_lshl_b32 s{sT1}, s{sBH}, 11")
    a(f"s_add_u32 s{sT0}, s{sT0}, s{sT1}")
    a(f"s_add_u32 s36, s{sT0}, {WS_OF}")
    for qi, qb in enumerate("AB"):
        a(f"v_rcp_f32 v{TMP}, v{L[qb]}")
        a("s_nop 0")
        for i in range(16): a(f"v_mul_f32 v{O[qb]+i}, v{O[qb]+i}, v{TMP}")
        p = PP[qb]
        for i in range(8): a(f"v_cvt_pk_bf16_f32 v{p+i}, v{O[qb]+2*i}, v{O[qb]+2*i+1}")
        a(f"s_add_u32 s{sT0}, s36, {qi*131072}")
        for m in range(2):
            a(f"buffer_store_dwordx4 v[{p+4*m}:{p+4*m+3}], v{vOff}, s[{S_WS}:{S_WS+3}], s{sT0} offen offset:{m*1024}")
    if prof:
        a("s_waitcnt vmcnt(0)")
        P.stamp(a)
    P.flush(a, sW_, 48, 49, name)
    a.label(f"{name}_end")
    a("s_endpgm")
    return a.text(), NV, RS*STB + 64
```

```python
from common import *

def gen_k3(name, prof=False, kidx=2, D=4):
    a = Asm()
    kernel_head(a, name)
    P = Prof(prof, kidx)
    S_WS, S_W, S_OUT = 4, 8, 12
    sW_, sTB, sB, sTG, sCG = 20, 21, 22, 23, 24
    sT0, sT1, sOF, sWO, sLW = 28, 29, 30, 31, 32
    vLane, vT0, vT1, vT2 = 1, 2, 3, 4
    vOff, vOffW, vAW, vCW = 5, 6, 7, 8
    OFR = 16
    NB = D + 1
    WFR = OFR + NB*16
    ACC = WFR + 16
    vG = ACC + 32
    NV = vG + 24
    STB = 16384
    NS = 16

    a("s_cmp_ge_u32 s2, 256")
    a(f"s_cbranch_scc1 {name}_end")
    P.stamp(a, wait=False)
    a(f"s_load_dwordx2 s[40:41], s[0:1], {KA_WOA}")
    a(f"s_load_dwordx2 s[42:43], s[0:1], {KA_WOB}")
    a(f"s_load_dwordx2 s[44:45], s[0:1], {KA_OUT}")
    a(f"s_load_dwordx2 s[48:49], s[0:1], {KA_WS}")
    a(f"v_lshrrev_b32 v{vT0}, 6, v0")
    a(f"v_and_b32 v{vLane}, 63, v0")
    a(f"v_readfirstlane_b32 s{sW_}, v{vT0}")
    a(f"s_and_b32 s{sT0}, s2, 7")
    a(f"s_lshr_b32 s{sT1}, s2, 3")
    a(f"s_and_b32 s{sTG}, s{sT1}, 1")
    a(f"s_lshl_b32 s{sT0}, s{sT0}, 1")
    a(f"s_add_u32 s{sTG}, s{sTG}, s{sT0}")
    a(f"s_lshr_b32 s{sCG}, s{sT1}, 1")
    a(f"s_and_b32 s{sTB}, s{sW_}, 3")
    a(f"s_lshr_b32 s{sB}, s{sW_}, 2")
    a(f"v_lshlrev_b32 v{vOff}, 4, v{vLane}")
    a("s_waitcnt lgkmcnt(0)")
    srd(a, S_WS, 48, 49, WS_SIZE)
    a(f"s_cmp_eq_u32 s{sB}, 0")
    a(f"s_cselect_b32 s{S_W}, s40, s42")
    a(f"s_cselect_b32 s{S_W+1}, s41, s43")
    a(f"s_mov_b32 s{S_W+2}, {1024*1024*2}")
    a(f"s_mov_b32 s{S_W+3}, 0x20000")
    srd(a, S_OUT, 44, 45, 2048*1024*2)
    a(f"s_lshl_b32 s{sT0}, s{sTG}, 2")
    a(f"s_add_u32 s{sT0}, s{sT0}, s{sTB}")
    a(f"s_lshl_b32 s{sOF}, s{sT0}, 17")
    a(f"s_lshl_b32 s{sT1}, s{sB}, 16")
    a(f"s_add_u32 s{sOF}, s{sOF}, s{sT1}")
    a(f"s_add_u32 s{sOF}, s{sOF}, {WS_OF}")
    a(f"v_lshrrev_b32 v{vT0}, 3, v{vLane}")
    a(f"s_lshl_b32 s{sT0}, s{sTB}, 4")
    a(f"v_add_u32 v{vT0}, s{sT0}, v{vT0}")
    a(f"v_lshrrev_b32 v{vT1}, 1, v{vT0}")
    a(f"v_and_b32 v{vT1}, 1, v{vT1}")
    a(f"v_lshlrev_b32 v{vT1}, 2, v{vT1}")
    a(f"v_and_b32 v{vT2}, 7, v{vLane}")
    a(f"v_xor_b32 v{vT1}, v{vT1}, v{vT2}")
    a(f"v_lshlrev_b32 v{vT1}, 4, v{vT1}")
    a(f"v_lshl_add_u32 v{vOffW}, v{vT0}, 11, v{vT1}")
    a(f"s_lshl_b32 s{sWO}, s{sCG}, 7")
    a(f"s_lshl_b32 s{sLW}, s{sB}, 13")
    a(f"s_lshl_b32 s{sT0}, s{sTB}, 11")
    a(f"s_add_u32 s{sLW}, s{sLW}, s{sT0}")
    a(f"v_and_b32 v{vT0}, 15, v{vLane}")
    a(f"v_lshrrev_b32 v{vT1}, 5, v{vLane}")
    a(f"v_lshlrev_b32 v{vT1}, 2, v{vT1}")
    a(f"v_lshrrev_b32 v{vT2}, 2, v{vT0}")
    a(f"v_add_u32 v{vT1}, v{vT1}, v{vT2}")
    a(f"v_lshlrev_b32 v{vAW}, 7, v{vT1}")
    a(f"v_lshrrev_b32 v{vT1}, 3, v{vT0}")
    a(f"v_lshl_add_u32 v{vAW}, v{vT1}, 6, v{vAW}")
    a(f"v_bfe_u32 v{vT1}, v{vLane}, 4, 1")
    a(f"v_lshl_add_u32 v{vAW}, v{vT1}, 5, v{vAW}")
    a(f"v_and_b32 v{vT1}, 3, v{vT0}")
    a(f"v_lshl_add_u32 v{vAW}, v{vT1}, 3, v{vAW}")
    a(f"s_lshl_b32 s{sT0}, s{sB}, 13")
    a(f"v_add_u32 v{vAW}, s{sT0}, v{vAW}")
    a(f"v_xor_b32 v{vAW+2}, 64, v{vAW}")
    vAW1 = vAW + 2

    def issue(st):
        slot = (st % NB)*STB
        for p in range(2):
            a(f"s_add_u32 m0, s{sLW}, {slot + p*1024}")
            a(f"s_add_u32 s{sT0}, s{sWO}, {st*64*2048 + p*8*2048}")
            a(f"buffer_load_dwordx4 v{vOffW}, s[{S_W}:{S_W+3}], s{sT0} offen lds")
        o = OFR + (st % NB)*16
        a(f"s_add_u32 s{sT0}, s{sOF}, {st*4096}")
        for c in range(4):
            a(f"buffer_load_dwordx4 v[{o+4*c}:{o+4*c+3}], v{vOff}, s[{S_WS}:{S_WS+3}], s{sT0} offen offset:{c*1024}")
    for st in range(D): issue(st)
    for i in range(32): a(f"v_mov_b32 v{ACC+i}, 0")
    def rdW(fs, st, c):
        slot = (st % NB)*STB
        r = []
        for ct in range(2):
            for u in range(2):
                d = WFR + fs*8 + ct*4 + 2*u
                off = slot + (32*(c >> 1) + 16*(c & 1) + 8*u)*128
                r.append((d, vAW if ct == 0 else vAW1, off))
        return r
    def emit_rd(lst):
        for d, ad, off in lst:
            assert off < 65536 + 16384
            if off < 65536: a(f"ds_read_b64_tr_b16 v[{d}:{d+1}], v{ad} offset:{off}")
            else: raise Exception("offset")
    for st in range(NS):
        issued = min(st + D, NS)
        a(f"s_waitcnt vmcnt({6*(issued - st - 1)})")
        a("s_barrier")
        if st in (0, 8): P.stamp(a)
        if st + D < NS: issue(st + D)
        emit = []
        slot = (st % NB)*STB
        if slot >= 49152:
            a(f"v_add_u32 v{vAW+4}, {slot}, v{vAW}")
            a(f"v_add_u32 v{vAW+5}, {slot}, v{vAW1}")
        def rd(fs, c):
            for d, ad, off in rdW(fs, st, c):
                if slot >= 49152:
                    ad = vAW+4 if ad == vAW else vAW+5
                    off -= slot
                a(f"ds_read_b64_tr_b16 v[{d}:{d+1}], v{ad} offset:{off}")
        rd(0, 0)
        for c in range(4):
            if c < 3: rd((c+1) & 1, c+1)
            a(f"s_waitcnt lgkmcnt({4 if c < 3 else 0})")
            o = OFR + (st % NB)*16 + 4*c
            for ct in range(2):
                w = WFR + (c & 1)*8 + ct*4
                d = ACC + ct*16
                a(f"v_mfma_f32_32x32x16_bf16 v[{d}:{d+15}], v[{w}:{w+3}], v[{o}:{o+3}], v[{d}:{d+15}]")
    P.stamp(a)
    RSTR = 272
    AREA = 128*RSTR
    a("s_barrier")
    a(f"v_and_b32 v{vT0}, 31, v{vLane}")
    a(f"s_lshl_b32 s{sT0}, s{sTB}, 5")
    a(f"v_add_u32 v{vT0}, s{sT0}, v{vT0}")
    a(f"v_mul_u32_u24 v{vT0}, {RSTR}, v{vT0}")
    a(f"v_lshrrev_b32 v{vT1}, 5, v{vLane}")
    a(f"v_lshl_add_u32 v{vT0}, v{vT1}, 4, v{vT0}")
    a(f"s_mul_i32 s{sT0}, s{sB}, {AREA}")
    a(f"v_add_u32 v{vT0}, s{sT0}, v{vT0}")
    a("s_nop 7")
    for ct in range(2):
        for q in range(4):
            d = ACC + ct*16 + 4*q
            a(f"ds_write_b128 v{vT0}, v[{d}:{d+3}] offset:{ct*128 + q*32}")
    a(f"v_lshrrev_b32 v{vT1}, 3, v0")
    a(f"s_lshl_b32 s{sT0}, s{sTG}, 7")
    a(f"v_add_u32 v{vT2}, s{sT0}, v{vT1}")
    a(f"v_lshlrev_b32 v{vG}, 2, v{vT2}")
    a(f"v_add_u32 v{vG}, {WS_G}, v{vG}")
    a(f"buffer_load_dword v{vG+1}, v{vG}, s[{S_WS}:{S_WS+3}], 0 offen")
    a(f"buffer_load_dword v{vG+2}, v{vG}, s[{S_WS}:{S_WS+3}], 0 offen offset:256")
    a(f"v_and_b32 v{vG+3}, 7, v0")
    a(f"v_mul_u32_u24 v{vG+4}, {RSTR}, v{vT1}")
    a(f"v_lshl_add_u32 v{vG+4}, v{vG+3}, 5, v{vG+4}")
    a(f"v_lshlrev_b32 v{vG+5}, 11, v{vT2}")
    a(f"v_lshl_add_u32 v{vG+5}, v{vG+3}, 4, v{vG+5}")
    a(f"s_lshl_b32 s{sT1}, s{sCG}, 7")
    a("s_waitcnt lgkmcnt(0)")
    a("s_barrier")
    for half in range(2):
        ra, rb = OFR + half*16, OFR + half*16 + 8
        off = half*64*RSTR
        a(f"ds_read_b128 v[{ra}:{ra+3}], v{vG+4} offset:{off}")
        a(f"ds_read_b128 v[{ra+4}:{ra+7}], v{vG+4} offset:{off+16}")
        a(f"ds_read_b128 v[{rb}:{rb+3}], v{vG+4} offset:{off+AREA if off+AREA+16 < 65536 else 0}") if off + AREA + 16 < 65536 else None
        a(f"ds_read_b128 v[{rb+4}:{rb+7}], v{vG+4} offset:{off+AREA+16}")
    a("s_waitcnt vmcnt(0) lgkmcnt(0)")
    for half in range(2):
        ra, rb = OFR + half*16, OFR + half*16 + 8
        g = vG + 1 + half
        a(f"v_sub_f32 v{vG+6}, 1.0, v{g}")
        a(f"v_cvt_pk_bf16_f32 v{vG+6}, v{vG+6}, v{vG+6}")
        a(f"v_lshlrev_b32 v{vG+6}, 16, v{vG+6}")
        for i in range(8): a(f"v_mul_f32 v{ra+i}, v{ra+i}, v{g}")
        for i in range(8): a(f"v_fmac_f32 v{ra+i}, v{rb+i}, v{vG+6}")
        p = vG + 8 + half*4
        for i in range(4): a(f"v_cvt_pk_bf16_f32 v{p+i}, v{ra+2*i}, v{ra+2*i+1}")
        a(f"s_add_u32 s{sT0}, s{sT1}, {half*64*2048}")
        a(f"buffer_store_dwordx4 v[{p}:{p+3}], v{vG+5}, s[{S_OUT}:{S_OUT+3}], s{sT0} offen")
    if prof:
        a("s_waitcnt vmcnt(0)")
        P.stamp(a)
    P.flush(a, sW_, 48, 49, name)
    a.label(f"{name}_end")
    a("s_endpgm")
    return a.text(), NV, max(NB*STB, 2*AREA)
```

```python
import sys, os
sys.path.insert(0, os.path.dirname(__file__))
from common import *
from asmlib import check_kernel
import k1
def header(launches):
    ref = open("cdna_kernels/%s.s.ref" % NAME).read().split("\n")
    hdr = [l for l in ref if l.startswith(";") and "@launch" not in l and "Override launch" not in l and "grid=ceil" not in l]
    hdr = hdr[:12]
    s = "\n".join(hdr) + "\n"
    for k, g, b, lds in launches:
        s += f"; @launch kernel={k} grid=({g},1,1) block=({b},1,1) lds={lds}\n"
    s += '.amdgcn_target "amdgcn-amd-amdhsa--gfx950"\n'
    return s
def build(out, parts):
    launches = []; body = ""; descs = ""
    for name, text, nv, grid, block, lds, takes in parts:
        errs, vmax, smax = check_kernel(text, name, takes)
        print(f"{name}: vmax={vmax} smax={smax} instr_lines={text.count(chr(10))} errs={len(errs)}")
        for e in errs[:30]: print(e)
        assert vmax < nv, (vmax, nv)
        assert smax < 96
        launches.append((name, grid, block, lds))
        body += text; descs += kernel_desc(name, nv)
    src = header(launches) + body + descs
    open(out, "w").write(src)
    print("wrote", out, len(src), "bytes")
if __name__ == "__main__":
    import k2
    prof = "cyc" if "cyc" in sys.argv else ("prof" in sys.argv)
    R = 14 if "R14" in sys.argv else 20
    which = sys.argv[1]
    out = sys.argv[2]
    parts = []
    t, nv, lds = k1.gen_k1("qkv_kernel", R=R, prof=prof)
    parts.append(("qkv_kernel", t, nv, 256, 512, lds, ((),)))
    if which >= "k2":
        t, nv, lds = k2.gen_k2("attn_kernel", prof=prof)
        parts.append(("attn_kernel", t, nv, 256, 512, lds, ((), ("attn_kernel_havemax", "attn_kernel_final"), ("attn_kernel_nodma",))))
    if which >= "k3":
        import k3
        t, nv, lds = k3.gen_k3("oproj_kernel", prof=prof)
        parts.append(("oproj_kernel", t, nv, 256, 512, lds, ((),)))
    build(out, parts)
```

```python
import re

class Asm:
    def __init__(self):
        self.lines = []
    def __call__(self, s):
        for l in s.strip("\n").split("\n"):
            self.lines.append(l)
    def label(self, n):
        self.lines.append(n + ":")
    def text(self):
        out = []
        for l in self.lines:
            t = l.strip()
            if t.endswith(":") or t.startswith(".") or t.startswith(";") or not t:
                out.append(t)
            else:
                out.append("    " + t)
        return "\n".join(out) + "\n"

REG_RE = re.compile(r'^(-|\|)?(abs\()?([vsa])(\d+|\[(\d+):(\d+)\])\)?\|?$')
def parse_reg(tok):
    tok = tok.strip()
    if tok in ("vcc",): return {("s", "vcc_lo"), ("s", "vcc_hi")}
    if tok in ("vcc_lo", "vcc_hi"): return {("s", tok)}
    if tok == "exec": return {("s", "exec_lo"), ("s", "exec_hi")}
    if tok in ("exec_lo", "exec_hi"): return {("s", tok)}
    if tok == "m0": return {("s", "m0")}
    m = REG_RE.match(tok)
    if not m: return set()
    kind = m.group(3)
    if m.group(5) is not None:
        return {(kind, i) for i in range(int(m.group(5)), int(m.group(6)) + 1)}
    return {(kind, int(m.group(4)))}

TRANS = ("v_exp_f32", "v_log_f32", "v_rcp_f32", "v_rsq_f32", "v_sqrt_f32", "v_sin_f32", "v_cos_f32", "v_exp_f16", "v_rcp_iflag_f32")
class Ins:
    __slots__ = ("text", "op", "cls", "vw", "vr", "sw", "sr", "passes", "mA", "mB", "mC", "mD", "nop", "target",
                 "dpp", "sdwa", "lds_dma", "wide_store", "store_data", "vm", "lg", "wait", "idx", "trans", "smem")
    def __repr__(self): return self.text

def parse(line):
    t = line.split(";")[0].strip()
    if not t or t.startswith(".") : return None
    if t.endswith(":"): return ("label", t[:-1])
    parts = t.split(None, 1)
    op = parts[0]
    rest = parts[1] if len(parts) > 1 else ""
    ins = Ins(); ins.text = t; ins.op = op
    ins.vw = set(); ins.vr = set(); ins.sw = set(); ins.sr = set(); ins.passes = 0
    ins.mA = ins.mB = ins.mC = ins.mD = None; ins.nop = 1; ins.target = None
    ins.dpp = False; ins.sdwa = False; ins.lds_dma = False; ins.wide_store = False; ins.store_data = set()
    ins.vm = False; ins.lg = False; ins.wait = None; ins.trans = False; ins.smem = False
    ops = [o.strip() for o in rest.split(",")] if rest else []
    mods = []
    if ops:
        last = ops[-1].split()
        if len(last) > 1:
            ops[-1] = last[0]; mods = last[1:]
        elif len(last) == 1 and (":" in last[0] and not last[0].startswith(("v[", "s[", "a[")) and not last[0].startswith("-v[")):
            pass
    def addr(tok):
        for k, n in parse_reg(tok):
            (ins.vr if k in "va" else ins.sr).add((k, n))
    def addw(tok):
        for k, n in parse_reg(tok):
            (ins.vw if k in "va" else ins.sw).add((k, n))
    if op.startswith(("v_mfma", "v_smfmac")):
        ins.cls = "mfma"
        shape = re.search(r"_(\d+)x(\d+)x(\d+)", op)
        M = int(shape.group(1))
        ins.passes = 8 if M == 32 else 4
        ins.mD = parse_reg(ops[0]); ins.mA = parse_reg(ops[1]); ins.mB = parse_reg(ops[2])
        if op.startswith("v_smfmac"):
            ins.mC = set(ins.mD); ins.mB = ins.mB | parse_reg(ops[3])
        else:
            ins.mC = parse_reg(ops[3])
        ins.vw = set(ins.mD); ins.vr = ins.mA | ins.mB | ins.mC
    elif op.startswith("v_"):
        ins.cls = "valu"
        ins.trans = any(op.startswith(x) for x in TRANS)
        ins.dpp = ("_dpp" in op) or any(m.startswith(("row_", "quad_perm", "wave_", "row_bcast")) for m in mods)
        ins.sdwa = "_sdwa" in op
        if op.startswith("v_cmp"):
            addw(ops[0]); [addr(o) for o in ops[1:]]
            if op.startswith("v_cmpx"): addw("exec")
        elif op.startswith(("v_readfirstlane", "v_readlane")):
            addw(ops[0]); [addr(o) for o in ops[1:]]
        elif op.startswith(("v_add_co", "v_sub_co", "v_addc_co", "v_subb_co", "v_subrev_co")):
            addw(ops[0]); addw(ops[1]); [addr(o) for o in ops[2:]]
        elif op.startswith("v_permlane") and "swap" in op:
            addw(ops[0]); addw(ops[1]); addr(ops[0]); addr(ops[1])
        elif op.startswith("v_nop"):
            pass
        else:
            addw(ops[0]); [addr(o) for o in ops[1:]]
            if op.startswith(("v_fmac", "v_dot2c", "v_mac", "v_pk_fmac", "v_writelane")) or "UNUSED_PRESERVE" in t or ins.dpp:
                addr(ops[0])
            if op.startswith("v_cndmask") and len(ops) == 3: addr("vcc")
        addr("exec") if False else None
    elif op.startswith("ds_"):
        ins.cls = "ds"; ins.lg = True
        if op.startswith(("ds_read", "ds_bpermute", "ds_permute", "ds_swizzle")):
            addw(ops[0]); [addr(o) for o in ops[1:]]
        else:
            [addr(o) for o in ops]
    elif op.startswith("buffer_") or op.startswith("global_"):
        ins.cls = "vmem"; ins.vm = True
        if op in ("buffer_inv", "buffer_wbl2"):
            pass
        elif "lds" in mods or op.startswith("global_load_lds"):
            ins.lds_dma = True
            [addr(o) for o in ops]; addr("m0")
        elif "_load" in op:
            addw(ops[0]); [addr(o) for o in ops[1:]]
        elif "_store" in op:
            if op.startswith("buffer_"):
                data = ops[0]
            else:
                data = ops[1]
            [addr(o) for o in ops]
            ins.store_data = parse_reg(data)
            ins.wide_store = op.endswith(("x3", "x4"))
        elif "atomic" in op:
            [addr(o) for o in ops]
            if "sc0" in mods:
                addw(ops[0])
        else:
            raise ValueError("unknown vmem " + t)
    elif op.startswith("s_"):
        ins.cls = "salu"
        if op == "s_nop":
            ins.nop = int(ops[0], 0) + 1; ins.cls = "nop"
        elif op == "s_waitcnt":
            ins.cls = "wait"
            w = {}
            for m in re.finditer(r"(vmcnt|lgkmcnt|expcnt)\((\d+)\)", t): w[m.group(1)] = int(m.group(2))
            ins.wait = w
        elif op in ("s_barrier", "s_endpgm", "s_setprio", "s_sleep"):
            ins.cls = "misc"
        elif op.startswith(("s_branch", "s_cbranch")):
            ins.cls = "branch"; ins.target = ops[0]
            if "vcc" in op: addr("vcc")
            if "exec" in op: addr("exec")
        elif op.startswith(("s_load", "s_buffer_load", "s_memtime", "s_memrealtime")):
            ins.cls = "smem"; ins.lg = True; ins.smem = True
            addw(ops[0]); [addr(o) for o in ops[1:]]
        elif op.startswith(("s_cmp", "s_bitcmp")):
            [addr(o) for o in ops]
        elif op.startswith(("s_and_saveexec", "s_or_saveexec")):
            addw(ops[0]); addr(ops[1]); addw("exec"); addr("exec")
        else:
            addw(ops[0]); [addr(o) for o in ops[1:]]
            if op.startswith(("s_addk", "s_mulk", "s_cmov")): addr(ops[0])
    else:
        raise ValueError("unknown instruction: " + t)
    return ins

def parse_all(text):
    prog = []; labels = {}
    for ln in text.split("\n"):
        p = parse(ln)
        if p is None: continue
        if isinstance(p, tuple):
            labels[p[1]] = len(prog); continue
        p.idx = len(prog)
        prog.append(p)
    return prog, labels

def _need(prod, cons):
    best = (0, "")
    def up(n, why):
        nonlocal best
        if n > best[0]: best = (n, why)
    if prod.cls == "valu":
        if prod.op.startswith("v_dot"):
            if (prod.vw & (cons.vr | cons.vw)) and cons.op != prod.op: up(3, "DOT->other")
            if cons.op == prod.op and len(prod.vw & cons.vr) and not (prod.vw & cons.vw): up(3, "DOT->DOT A/B")
        if cons.cls == "mfma" and (prod.vw & cons.vr): up(2, "VALU->MFMA")
        if cons.cls == "valu":
            if prod.trans and not cons.trans and (prod.vw & cons.vr): up(1, "trans->VALU")
            if prod.trans and cons.trans and (prod.vw & cons.vr): up(1, "trans->trans (conservative)")
            if (prod.sw & cons.sr):
                up(2, "VALU sgpr write->VALU read")
                if cons.op.startswith(("v_readlane", "v_writelane")): up(4, "lane select")
                if cons.op.startswith("v_div_fmas"): up(4, "div_fmas")
            if cons.op.startswith(("v_readfirstlane", "v_readlane")) and (prod.vw & cons.vr): up(1, "VALU->readlane")
            if cons.dpp and (prod.vw & cons.vr): up(2, "VALU->DPP")
            if cons.op.startswith("v_permlane") and (prod.vw & cons.vr): up(2, "VALU->permlane")
            if prod.sdwa and (prod.vw & (cons.vr | cons.vw)): up(1, "SDWA->VALU")
        if cons.cls == "vmem" and (prod.sw & cons.sr): up(5, "VALU sgpr write->VMEM")
    if prod.cls == "mfma":
        p8 = prod.passes == 8
        if cons.cls == "mfma":
            if cons.mC and (prod.mD & cons.mC):
                if prod.mD == cons.mC and prod.passes == cons.passes: pass
                else: up(10 if p8 else 6, "MFMA D->MFMA C overlap")
            if prod.mD & (cons.mA | cons.mB): up(12 if p8 else 8, "MFMA D->MFMA A/B")
            if (prod.mD & cons.mD) and not (cons.mC and prod.mD == cons.mC):
                if not (prod.mD == cons.mD and prod.passes == cons.passes): up(10 if p8 else 6, "MFMA D WAW overlap")
        elif cons.cls == "valu":
            if prod.mD & (cons.vr | cons.vw): up(12 if p8 else 8, "MFMA D->VALU")
            if prod.mC and (prod.mC & cons.vw): up(7 if p8 else 3, "MFMA C WAR VALU")
        elif cons.cls in ("vmem", "ds"):
            if prod.mD & (cons.vr | cons.vw): up(12 if p8 else 8, "MFMA D->mem")
            if prod.mC and (prod.mC & cons.vw): up(7 if p8 else 3, "MFMA C WAR load (conservative)")
    if prod.cls == "salu" and ("s", "m0") in prod.sw and cons.lds_dma: up(1, "M0->LDS DMA")
    if prod.cls == "vmem" and prod.wide_store:
        if cons.cls == "valu" and (prod.store_data & cons.vw): up(2, "store data WAR")
        elif cons.cls == "mfma" and (prod.store_data & cons.vw): up(2, "store data WAR mfma")
    return best

def _mask(regs):
    m = 0
    for k, n in regs:
        if k in "va": m |= 1 << n
        elif isinstance(n, int): m |= 1 << (512 + n)
        else: m |= 1 << (640 + {"vcc_lo": 0, "vcc_hi": 1, "exec_lo": 2, "exec_hi": 3, "m0": 4}[n])
    return m
_cache = {}
def check_seq(seq, errs, seen, pm, cm):
    pair_ok = set()
    n = len(seq)
    for i in range(n):
        c = seq[i]
        mc = cm[c.idx]
        if not mc: continue
        dist = 0
        j = i - 1
        while j >= 0 and dist < 13:
            p = seq[j]
            if pm[p.idx] & mc:
                key = (p.idx, c.idx)
                r = _cache.get(key)
                if r is None:
                    r = _need(p, c); _cache[key] = r
                nn, why = r
                if nn > dist:
                    k2 = (p.idx, c.idx, why)
                    if k2 not in seen:
                        seen.add(k2)
                        errs.append(f"HAZARD {why}: need {nn} have {dist}\n    prod[{p.idx}]: {p.text}\n    cons[{c.idx}]: {c.text}")
            dist += p.nop
            j -= 1

def trace_paths(prog, labels, start, loops=2, take=None, maxlen=400000):
    take = take or set()
    seq = []; pc = start; cnt = {}
    while pc < len(prog) and len(seq) < maxlen:
        ins = prog[pc]; seq.append(ins)
        if ins.op == "s_endpgm": break
        if ins.cls == "branch":
            tgt = labels[ins.target]
            if ins.op == "s_branch":
                if tgt <= pc:
                    cnt[("b", pc)] = cnt.get(("b", pc), 0) + 1
                    if cnt[("b", pc)] > 1: break
                    take = set(take) | {ins.target.replace("_restart", "_havemax"), ins.target.replace("_restart", "_final")}
                pc = tgt; continue
            if tgt <= pc:
                cnt[pc] = cnt.get(pc, 0) + 1
                if cnt[pc] < loops:
                    pc = tgt; continue
                cnt[pc] = 0
            elif ins.target in take:
                pc = tgt; continue
        pc += 1
    return seq

def check_waits(seq, errs, seen, allm, dstm):
    vmq = []; lgq = []
    vpend = 0; lpend = 0
    def pend(q):
        m = 0
        for x in q: m |= dstm[x.idx]
        return m
    for ins in seq:
        if ins.cls == "wait":
            if "vmcnt" in ins.wait:
                n = ins.wait["vmcnt"]
                if len(vmq) > n:
                    del vmq[:len(vmq)-n]; vpend = pend(vmq)
            if "lgkmcnt" in ins.wait:
                n = ins.wait["lgkmcnt"]
                if any(x.smem for x in lgq):
                    if n == 0: lgq.clear(); lpend = 0
                elif len(lgq) > n:
                    del lgq[:len(lgq)-n]; lpend = pend(lgq)
            continue
        t = allm[ins.idx] & ~(1 << 251)
        if t & (vpend | lpend):
            for q, nm in ((vmq, "vmcnt"), (lgq, "lgkmcnt")):
                for p in q:
                    if dstm[p.idx] & t:
                        key = (p.idx, ins.idx, nm)
                        if key not in seen:
                            seen.add(key)
                            errs.append(f"MISSING WAIT {nm}:\n    load[{p.idx}]: {p.text}\n    use[{ins.idx}]: {ins.text}")
        if ins.vm:
            vmq.append(ins); vpend |= dstm[ins.idx]
            if len(vmq) > 63:
                key = ("vmov", ins.idx)
                if key not in seen:
                    seen.add(key); errs.append(f"vmcnt overflow at [{ins.idx}] {ins.text}")
        if ins.lg:
            lgq.append(ins); lpend |= dstm[ins.idx]
            if len(lgq) > 15 and not any(x.smem for x in lgq):
                key = ("lgov", ins.idx)
                if key not in seen:
                    seen.add(key); errs.append(f"note: lgkmcnt >15 outstanding at [{ins.idx}] {ins.text}")

def check_kernel(text, entry, takes=((),), verbose=True):
    prog, labels = parse_all(text)
    _cache.clear()
    pm = [ (_mask(i.vw | i.sw | (i.mC or set()) | i.store_data) if i.cls in ("valu", "mfma", "salu", "vmem") else 0) for i in prog]
    cm = [ _mask(i.vw | i.vr | i.sw | i.sr) for i in prog]
    dstm = [ _mask(i.vw | i.sw) for i in prog]
    errs = []; seen = set()
    for take in takes:
        seq = trace_paths(prog, labels, labels[entry], loops=2, take=set(take))
        check_seq(seq, errs, seen, pm, cm)
        check_waits(seq, errs, seen, cm, dstm)
    vmax = max([n for i in prog for k, n in (i.vw | i.vr) if k == "v"] + [0])
    smax = max([n for i in prog for k, n in (i.sw | i.sr) if k == "s" and isinstance(n, int)] + [0])
    return errs, vmax, smax
```

```python
from asmlib import Asm
NAME = "gated_mix__mha_block__softmax_full_mha__prompt"
KA_X, KA_WA, KA_WOA, KA_BX, KA_WB, KA_WOB, KA_GW, KA_OUT, KA_DBG, KA_WS = 0, 8, 16, 24, 32, 40, 48, 56, 64, 72
WS_QF  = 0
WS_KV  = 8 << 20
WS_OF  = 24 << 20
WS_G   = 32 << 20
WS_F   = 33 << 20
WS_SIZE = (33 << 20) + 16384
QSCALE = 1.4426950408889634 * (32 ** -0.5)
import struct
def f32(x): return "0x%08x" % struct.unpack("<I", struct.pack("<f", x))[0]

def srd(a, s, lo, hi, nbytes):
    a(f"s_mov_b32 s{s}, s{lo}")
    a(f"s_mov_b32 s{s+1}, s{hi}")
    a(f"s_mov_b32 s{s+2}, {nbytes}")
    a(f"s_mov_b32 s{s+3}, 0x20000")

def kernel_head(a, name):
    a(".text")
    a(f".globl {name}")
    a(".p2align 8")
    a(f".type {name},@function")
    a.label(name)

def kernel_desc(name, nvgpr, nsgpr=96):
    acc = (nvgpr + 3)//4*4
    return f""".section .rodata,"a"
.p2align 6
.amdhsa_kernel {name}
  .amdhsa_next_free_vgpr {nvgpr}
  .amdhsa_next_free_sgpr {nsgpr}
  .amdhsa_accum_offset {acc}
  .amdhsa_group_segment_fixed_size 0
  .amdhsa_kernarg_size 80
  .amdhsa_user_sgpr_count 2
  .amdhsa_user_sgpr_kernarg_segment_ptr 1
  .amdhsa_system_sgpr_workgroup_id_x 1
.end_amdhsa_kernel
"""
def vr(a, n=1): return f"v{a}" if n == 1 else f"v[{a}:{a+n-1}]"
def sr(a, n=1): return f"s{a}" if n == 1 else f"s[{a}:{a+n-1}]"

WS_T = 40 << 20
class Prof:
    def __init__(self, on, kidx):
        self.on = on; self.kidx = kidx; self.n = 0
    def stamp(self, a, wait=True):
        if not self.on: return
        i = self.n; self.n += 1
        assert i < 14
        a(f"{'s_memtime' if self.on == 'cyc' else 's_memrealtime'} s[{64+2*i}:{65+2*i}]")
        if wait: a("s_waitcnt lgkmcnt(0)")
    def cyc(self, a):
        if not self.on: return
        i = self.n; self.n += 1
        a(f"s_memtime s[{64+2*i}:{65+2*i}]")
        a("s_waitcnt lgkmcnt(0)")
    def flush(self, a, swave, wslo, wshi, name):
        if not self.on: return
        a("s_waitcnt lgkmcnt(0)")
        a(f"s_mov_b32 s92, s{wslo}")
        a(f"s_mov_b32 s93, s{wshi}")
        a(f"s_mov_b32 s94, {64 << 20}")
        a(f"s_mov_b32 s95, 0x20000")
        a(f"s_lshl_b32 s63, s2, 3")
        a(f"s_add_u32 s63, s63, s{swave}")
        a(f"s_lshl_b32 s63, s63, 6")
        a(f"s_add_u32 s63, s63, {WS_T + self.kidx*256*8*64}")
        a("v_mov_b32 v1, 0")
        for i in range(self.n):
            a(f"v_mov_b32 v2, s{64+2*i}")
            a(f"buffer_store_dword v2, v1, s[92:95], s63 offen offset:{4*i}")
```

```python
from common import *

ORDER = "e e Q0 e e c e e c Q1 e e c e e c P0 e e c e e c P1 e e c S c"
SPIN = 6000

def gen_fused(name, prof=False, opt=()):
    a = Asm()
    P = Prof(prof, 0)
    R = 20; RB = R*8192
    kernel_head(a, name)
    S_A, S_B, S_WS, S_GW, S_DBG = 4, 8, 12, 16, 36
    sW_, sWM, sHH, sG, sE, sB, sT, sBH = 20, 21, 22, 23, 24, 25, 26, 27
    sT0, sT1 = 28, 29
    sCG, sEP, sWO3, sLW3, sTG = 46, 47, 60, 61, 62
    pX, pWA, pWOA, pWB, pWOB, pGW, pOUT, pDBG, pWS = 40, 42, 44, 48, 50, 52, 54, 56, 58
    vLane, vT0, vT1, vT2, vOff = 1, 2, 3, 4, 5
    vOffW3, vRdH, vC1, vInitA, vPoll, vTouch, vTouchA = 240, 241, 242, 243, 244, 248, 249
    KVP = 208
    def lane0(body, nl=1):
        a(f"v_cmp_gt_u32 vcc, {nl}, v{vLane}")
        a(f"s_and_saveexec_b64 s[16:17], vcc")
        body()
        a(f"s_mov_b64 exec, s[16:17]")
    def guard(label, cmp, body):
        a(cmp)
        a(f"s_cbranch_scc0 {label}")
        body()
        a.label(label)

    a("s_cmp_ge_u32 s2, 256")
    a(f"s_cbranch_scc1 {name}_end")
    P.stamp(a, wait=False)
    a(f"s_load_dwordx4 s[40:43], s[0:1], 0")
    a(f"s_load_dwordx2 s[44:45], s[0:1], 16")
    a(f"s_load_dwordx4 s[48:51], s[0:1], 32")
    a(f"s_load_dwordx4 s[52:55], s[0:1], 48")
    a(f"s_load_dwordx4 s[56:59], s[0:1], 64")
    a(f"v_lshrrev_b32 v{vT0}, 6, v0")
    a(f"v_and_b32 v{vLane}, 63, v0")
    a(f"v_readfirstlane_b32 s{sW_}, v{vT0}")
    a(f"s_and_b32 s{sG}, s2, 31")
    a(f"s_lshr_b32 s{sE}, s2, 5")
    a(f"s_lshr_b32 s{sB}, s{sG}, 4")
    a(f"s_and_b32 s{sT}, s{sG}, 15")
    a(f"s_and_b32 s{sWM}, s{sW_}, 3")
    a(f"s_lshr_b32 s{sHH}, s{sW_}, 2")
    a(f"s_lshl_b32 s{sBH}, s{sB}, 5")
    a(f"s_lshl_b32 s{sT0}, s{sT}, 1")
    a(f"s_add_u32 s{sBH}, s{sBH}, s{sT0}")
    a(f"s_add_u32 s{sBH}, s{sBH}, s{sHH}")
    a(f"v_lshlrev_b32 v{vOff}, 4, v{vLane}")

    sW1024, sXK, sWK, sXB, sWM8, sGOFF = 30, 31, 32, 33, 34, 35
    vOffX, vOffW, vAX, vAW, vCX, vCW = 10, 11, 12, 16, 17, 21
    FR = [24, 44]; ACC = 64; vG = 160
    def accreg(y, tb): return ACC + (y*2 + tb)*16
    a(f"s_lshl_b32 s{sW1024}, s{sW_}, 10")
    a(f"s_lshl_b32 s{sWM8}, s{sWM}, 13")
    a(f"v_lshrrev_b32 v{vT0}, 3, v{vLane}")
    a(f"s_lshl_b32 s{sT0}, s{sW_}, 3")
    a(f"v_add_u32 v{vT0}, s{sT0}, v{vT0}")
    a(f"v_lshrrev_b32 v{vT1}, 1, v{vT0}")
    a(f"v_and_b32 v8, 7, v{vT1}")
    a(f"v_and_b32 v{vT2}, 7, v{vLane}")
    a(f"v_xor_b32 v8, v8, v{vT2}")
    a(f"v_lshlrev_b32 v8, 4, v8")
    a(f"v_lshl_add_u32 v{vOffX}, v{vT0}, 11, v8")
    a(f"v_and_b32 v{vT1}, 1, v{vT1}")
    a(f"v_lshlrev_b32 v{vT1}, 2, v{vT1}")
    a(f"v_xor_b32 v{vT1}, v{vT1}, v{vT2}")
    a(f"v_lshlrev_b32 v{vT1}, 4, v{vT1}")
    a(f"v_mul_u32_u24 v{vT0}, 6144, v{vT0}")
    a(f"v_add_u32 v{vOffW}, v{vT0}, v{vT1}")
    a(f"s_lshl_b32 s{sXK}, s{sE}, 19")
    a(f"s_lshl_b32 s{sWK}, s{sT}, 7")
    a("s_waitcnt lgkmcnt(0)")
    srd(a, S_A, pX, pX+1, 2048*1024*2)
    a(f"s_cmp_eq_u32 s{sB}, 0")
    a(f"s_cselect_b32 s{S_B}, s{pWA}, s{pWB}")
    a(f"s_cselect_b32 s{S_B+1}, s{pWA+1}, s{pWB+1}")
    a(f"s_mov_b32 s{S_B+2}, {1024*3072*2}")
    a(f"s_mov_b32 s{S_B+3}, 0x20000")
    srd(a, S_WS, pWS, pWS+1, WS_SIZE)
    srd(a, S_DBG, pDBG, pDBG+1, 256)
    a(f"s_lshl_b32 s{sT0}, s{sW_}, 8")
    a(f"s_add_u32 s{sT0}, s{sT0}, s2")
    def zero_line():
        for i in range(4): a(f"v_mov_b32 v{24+i}, 0")
        a(f"s_lshl_b32 s{sT0}, s2, 8")
        a(f"s_add_u32 s{sT0}, s{sT0}, {WS_F}")
        a(f"v_mov_b32 v28, s{sT0}")
        lane0(lambda: a(f"buffer_store_dwordx4 v[24:27], v28, s[{S_WS}:{S_WS+3}], 0 offen sc1"))
    guard(f"{name}_nz", f"s_cmp_lt_u32 s{sT0}, 64", zero_line)
    def dma(u):
        st, r = divmod(u, 7)
        slot = (u % R)*8192
        a(f"s_add_u32 m0, s{sW1024}, {slot}")
        if r < 4:
            a(f"s_add_u32 s{sT0}, s{sXK}, {r*131072 + st*128}")
            a(f"buffer_load_dwordx4 v{vOffX}, s[{S_A}:{S_A+3}], s{sT0} offen lds")
        else:
            a(f"s_add_u32 s{sT0}, s{sWK}, {st*64*6144 + (r-4)*2048}")
            a(f"buffer_load_dwordx4 v{vOffW}, s[{S_B}:{S_B+3}], s{sT0} offen lds")
    NU = 16*7
    for u in range(R-7): dma(u)
    srd(a, S_GW, pGW, pGW+1, 2048)
    a(f"s_lshl_b32 s{sT0}, s{sE}, 5")
    a(f"s_add_u32 s{sT0}, s{sT0}, s{sG}")
    a(f"s_lshl_b32 s{sT0}, s{sT0}, 3")
    a(f"s_add_u32 s{sT0}, s{sT0}, s{sW_}")
    a(f"s_lshl_b32 s{sGOFF}, s{sT0}, 2")
    a(f"s_lshl_b32 s{sT0}, s{sT0}, 11")
    a(f"v_lshlrev_b32 v{vT1}, 5, v{vLane}")
    a(f"buffer_load_dwordx4 v[{vG}:{vG+3}], v{vT1}, s[{S_A}:{S_A+3}], s{sT0} offen")
    a(f"buffer_load_dwordx4 v[{vG+4}:{vG+7}], v{vT1}, s[{S_A}:{S_A+3}], s{sT0} offen offset:16")
    a(f"buffer_load_dwordx4 v[{vG+8}:{vG+11}], v{vT1}, s[{S_GW}:{S_GW+3}], 0 offen")
    a(f"buffer_load_dwordx4 v[{vG+12}:{vG+15}], v{vT1}, s[{S_GW}:{S_GW+3}], 0 offen offset:16")
    a(f"v_and_b32 v{vT0}, 31, v{vLane}")
    a(f"v_lshrrev_b32 v{vT1}, 5, v{vLane}")
    a(f"v_lshrrev_b32 v{vT2}, 1, v{vT0}")
    a(f"v_and_b32 v{vT2}, 7, v{vT2}")
    a(f"v_xor_b32 v{vT1}, v{vT1}, v{vT2}")
    a(f"v_lshlrev_b32 v{vT1}, 4, v{vT1}")
    a(f"v_lshl_add_u32 v{vAX}, v{vT0}, 7, v{vT1}")
    for s in range(1, 4): a(f"v_xor_b32 v{vAX+s}, {32*s}, v{vAX}")
    def tr_pattern(dst, ksh, hsel):
        a(f"v_and_b32 v{vT0}, 15, v{vLane}")
        a(f"v_lshrrev_b32 v{vT1}, 5, v{vLane}")
        a(f"v_lshlrev_b32 v{vT1}, {ksh}, v{vT1}")
        a(f"v_lshrrev_b32 v{vT2}, 2, v{vT0}")
        a(f"v_add_u32 v{vT1}, v{vT1}, v{vT2}")
        a(f"v_lshlrev_b32 v{dst}, 7, v{vT1}")
        a(f"v_lshrrev_b32 v{vT1}, 3, v{vT0}")
        if hsel is not None: a(f"v_xor_b32 v{vT1}, s{hsel}, v{vT1}")
        a(f"v_lshl_add_u32 v{dst}, v{vT1}, 6, v{dst}")
        a(f"v_bfe_u32 v{vT1}, v{vLane}, 4, 1")
        a(f"v_lshl_add_u32 v{dst}, v{vT1}, 5, v{dst}")
        a(f"v_and_b32 v{vT1}, 3, v{vT0}")
        a(f"v_lshl_add_u32 v{dst}, v{vT1}, 3, v{dst}")
    tr_pattern(vAW, 3, sHH)
    for i in range(96): a(f"v_mov_b32 v{ACC+i}, 0")
    lt = int(([x[2:] for x in opt if x.startswith("lt")] + ["2"])[0])
    a(f"s_and_b32 s{sT0}, s2, {(16 >> lt) - 1 & 7}")
    a(f"s_lshl_b32 s{sT0}, s{sT0}, {lt}")
    a(f"s_lshr_b32 s{sT1}, s2, 3")
    a(f"s_and_b32 s{sTG}, s{sT1}, {(1 << lt) - 1}")
    a(f"s_add_u32 s{sTG}, s{sTG}, s{sT0}")
    a(f"s_lshr_b32 s{sCG}, s{sT1}, {lt}")
    a(f"s_and_b32 s{sT0}, s2, 7")
    a(f"s_lshr_b32 s{sT0}, s{sT0}, {4 - lt}")
    a(f"s_lshl_b32 s{sT0}, s{sT0}, {5 - lt}")
    a(f"s_add_u32 s{sCG}, s{sCG}, s{sT0}")
    a(f"s_lshr_b32 s{sEP}, s{sTG}, 1")
    def gate_math():
        a(f"v_mov_b32 v{vG+16}, 0")
        for i in range(8): a(f"v_dot2c_f32_bf16 v{vG+16}, v{vG+i}, v{vG+8+i}")
        a("s_nop 3")
        for sh in (1, 2, 4, 8):
            a(f"v_add_f32_dpp v{vG+16}, v{vG+16}, v{vG+16} row_shr:{sh} row_mask:0xf bank_mask:0xf")
            a("s_nop 1")
        a(f"v_add_f32_dpp v{vG+16}, v{vG+16}, v{vG+16} row_bcast:15 row_mask:0xa bank_mask:0xf")
        a("s_nop 1")
        a(f"v_add_f32_dpp v{vG+16}, v{vG+16}, v{vG+16} row_bcast:31 row_mask:0xc bank_mask:0xf")
        a(f"v_cvt_pk_bf16_f32 v{vG+17}, v{vG+16}, v{vG+16}")
        a(f"v_lshlrev_b32 v{vG+17}, 16, v{vG+17}")
        a(f"v_mul_f32 v{vG+17}, {f32(-1.4426950408889634)}, v{vG+17}")
        a(f"v_exp_f32 v{vG+17}, v{vG+17}")
        a("s_nop 0")
        a(f"v_add_f32 v{vG+17}, 1.0, v{vG+17}")
        a(f"v_rcp_f32 v{vG+17}, v{vG+17}")
        a("s_nop 0")
        a(f"v_cvt_pk_bf16_f32 v{vG+17}, v{vG+17}, v{vG+17}")
        a(f"v_lshlrev_b32 v{vG+17}, 16, v{vG+17}")

    def reads(fs, s):
        f = FR[fs]; r = []
        for tb in range(2): r.append(f"ds_read_b128 v[{f+4*tb}:{f+4*tb+3}], v{vCX+s} offset:{tb*4096}")
        for y in range(3):
            for u in range(2):
                d = f + 8 + 4*y + 2*u
                r.append(f"ds_read_b64_tr_b16 v[{d}:{d+1}], v{vCW+y} offset:{s*2048+u*512}")
        return r
    def mfmas(fs):
        f = FR[fs]; m = []
        for y in range(3):
            for tb in range(2):
                x = f"v[{f+4*tb}:{f+4*tb+3}]"; w = f"v[{f+8+4*y}:{f+8+4*y+3}]"
                d = accreg(y, tb); dd = f"v[{d}:{d+15}]"
                m.append(f"v_mfma_f32_32x32x16_bf16 {dd}, {w}, {x}, {dd}" if y < 2 else f"v_mfma_f32_32x32x16_bf16 {dd}, {x}, {w}, {dd}")
        return m
    def step(ms, rs, extra):
        rs = list(rs); extra = list(extra)
        for k, m in enumerate(ms):
            a(m)
            if k < 3:
                for _ in range(3 if k < 2 else 2):
                    if rs: a(rs.pop(0))
            elif extra: extra.pop(0)()
        for r in rs: a(r)
        for e in extra: e()
    for i in range(16):
        issued = min(7*(i-1) + R, NU)
        n = max(issued - 7*(i+1), 0)
        if i == 0: n += 4
        a(f"s_waitcnt vmcnt({n})" + (" lgkmcnt(0)" if i > 0 else ""))
        a("s_barrier")
        if i == 0:
            P.stamp(a)
            def init_sig():
                a(f"v_lshlrev_b32 v{vT0}, 6, v{vLane}")
                a(f"v_mov_b32 v{vT1}, 1")
                lane0(lambda: a(f"buffer_atomic_add v{vT1}, v{vT0}, s[{S_DBG}:{S_DBG+3}], 0 offen sc1"), 4)
            a(f"s_lshl_b32 s{sT0}, s{sW_}, 8")
            a(f"s_add_u32 s{sT0}, s{sT0}, s2")
            guard(f"{name}_ni", f"s_cmp_lt_u32 s{sT0}, 64", init_sig)
        if i == 8:
            a(f"s_and_b32 s{sT0}, s2, 3")
            a(f"s_lshl_b32 s{sT0}, s{sT0}, 6")
            a(f"v_mov_b32 v{vInitA}, s{sT0}")
            def init_poll():
                a(f"buffer_load_dword v{vPoll}, v{vInitA}, s[{S_DBG}:{S_DBG+3}], 0 offen sc1")
            guard(f"{name}_np", f"s_cmp_eq_u32 s{sW_}, 0", init_poll)
        base = (7*i) % R
        a(f"s_add_u32 s{sXB}, s{sWM8}, {base*8192}")
        a(f"s_cmp_ge_u32 s{sXB}, {RB}")
        a(f"s_cselect_b32 s{sT1}, {RB}, 0")
        a(f"s_sub_u32 s{sXB}, s{sXB}, s{sT1}")
        for s in range(4): a(f"v_add_u32 v{vCX+s}, s{sXB}, v{vAX+s}")
        for y in range(3): a(f"v_add_u32 v{vCW+y}, {((7*i+4+y) % R)*8192}, v{vAW}")
        todo = [u for u in range(7*(i-1)+R, 7*i+R) if u < NU]
        dmas = [(lambda u=u: dma(u)) for u in todo]
        if i == 0:
            for r in reads(0, 0): a(r)
            for d in dmas[:2]: d()
            dmas = dmas[2:]
        else:
            step(mfmas(1), reads(0, 0), dmas[:2]); dmas = dmas[2:]
        a("s_waitcnt lgkmcnt(0)")
        step(mfmas(0), reads(1, 1), dmas[:2]); dmas = dmas[2:]
        a("s_waitcnt lgkmcnt(0)")
        step(mfmas(1), reads(0, 2), dmas[:2]); dmas = dmas[2:]
        a("s_waitcnt lgkmcnt(0)")
        step(mfmas(0), reads(1, 3), dmas)
        if i == 1:
            gate_math()
    a("s_waitcnt lgkmcnt(0)")
    def spin(label, loadfn, checks):
        a(f"s_mov_b32 s18, {SPIN}")
        a.label(label + "_l")
        for k, (reg, target) in enumerate(checks):
            a(f"v_readfirstlane_b32 s{sT0}, v{reg}")
            a("s_nop 0")
            a(f"s_cmp_ge_u32 s{sT0}, {target}")
            if k + 1 < len(checks): a(f"s_cbranch_scc0 {label}_re")
        a(f"s_cbranch_scc1 {label}_ok")
        a.label(label + "_re")
        a(f"s_sub_u32 s18, s18, 1")
        a(f"s_cmp_eq_u32 s18, 0")
        a(f"s_cbranch_scc1 {label}_ok")
        loadfn()
        a("s_waitcnt vmcnt(0)")
        a(f"s_branch {label}_l")
        a.label(label + "_ok")
    def wave0(label, body): guard(label, f"s_cmp_eq_u32 s{sW_}, 0", body)
    def init_check():
        a("s_waitcnt vmcnt(0)")
        spin(f"{name}_spin0", lambda: a(f"buffer_load_dword v{vPoll}, v{vInitA}, s[{S_DBG}:{S_DBG+3}], 0 offen sc1"), [(vPoll, 64)])
    wave0(f"{name}_chk0", init_check)
    a("s_barrier")
    for m in mfmas(1): a(m)
    P.stamp(a)
    sKVS = 35
    a(f"s_lshl_b32 s{sT0}, s{sBH}, 6")
    a(f"s_lshl_b32 s{sT1}, s{sE}, 3")
    a(f"s_add_u32 s{sT0}, s{sT0}, s{sT1}")
    a(f"s_lshl_b32 s{sT1}, s{sWM}, 1")
    a(f"s_add_u32 s{sT0}, s{sT0}, s{sT1}")
    a(f"s_lshl_b32 s16, s{sT0}, 12")
    a(f"v_mov_b32 v{vT1}, s{sGOFF}")
    a(f"v_add_u32 v{vT1}, {WS_G}, v{vT1}")
    a(f"s_add_u32 s{sKVS}, s16, {WS_KV}")
    a(f"v_cmp_eq_u32 vcc, 63, v{vLane}")
    a(f"s_and_saveexec_b64 s[16:17], vcc")
    a(f"buffer_store_dword v{vG+17}, v{vT1}, s[{S_WS}:{S_WS+3}], 0 offen sc1")
    a(f"s_mov_b64 exec, s[16:17]")
    a(f"s_lshl_b32 s{sT0}, s{sWM}, 14")
    a(f"s_lshl_b32 s{sT1}, s{sHH}, 13")
    a(f"s_add_u32 s{sT0}, s{sT0}, s{sT1}")
    a(f"v_add_u32 v6, s{sT0}, v{vOff}")
    tiles = [(1, 0), (1, 1), (2, 0), (2, 1)]
    for n, (y, tb) in enumerate(tiles):
        d = accreg(y, tb); p = KVP + n*8
        for r in range(8): a(f"v_cvt_pk_bf16_f32 v{p+r}, v{d+2*r}, v{d+2*r+1}")
        off = 0 if y == 1 else 2048
        for m in range(2):
            a(f"ds_write_b128 v6, v[{p+4*m}:{p+4*m+3}] offset:{tb*4096+off+m*1024}")
    def kv_stores():
        for n, (y, tb) in enumerate(tiles):
            p = KVP + n*8; off = 0 if y == 1 else 2048
            a(f"s_add_u32 s{sT1}, s{sKVS}, {tb*4096}")
            for m in range(2):
                a(f"buffer_store_dwordx4 v[{p+4*m}:{p+4*m+3}], v{vOff}, s[{S_WS}:{S_WS+3}], s{sT1} offen offset:{off+m*1024} sc1")
    def level_stores(j): guard(f"{name}_st{j}", f"s_cmp_eq_u32 s{sWM}, {j}", kv_stores)
    level_stores(0)
    Q = {"A": 8, "B": 16}
    a(f"s_mov_b32 s{sT0}, {f32(QSCALE)}")
    for tb, qb in enumerate("AB"):
        d = accreg(0, tb)
        for r in range(16): a(f"v_mul_f32 v{d+r}, s{sT0}, v{d+r}")
        for r in range(8): a(f"v_cvt_pk_bf16_f32 v{Q[qb]+r}, v{d+2*r}, v{d+2*r+1}")
    a(f"s_cmp_eq_u32 s{sHH}, 0")
    a(f"s_cselect_b32 s{S_A}, s{pWOA}, s{pWOB}")
    a(f"s_cselect_b32 s{S_A+1}, s{pWOA+1}, s{pWOB+1}")
    a(f"s_mov_b32 s{S_A+2}, {1024*1024*2}")
    a(f"s_mov_b32 s{S_A+3}, 0x20000")
    srd(a, S_B, pOUT, pOUT+1, 2048*1024*2)
    a(f"v_lshrrev_b32 v{vT0}, 3, v{vLane}")
    a(f"s_lshl_b32 s{sT0}, s{sWM}, 4")
    a(f"v_add_u32 v{vT0}, s{sT0}, v{vT0}")
    a(f"v_bfe_u32 v{vT1}, v{vT0}, 1, 1")
    a(f"v_lshlrev_b32 v{vT1}, 2, v{vT1}")
    a(f"v_and_b32 v{vT2}, 7, v{vLane}")
    a(f"v_xor_b32 v{vT1}, v{vT1}, v{vT2}")
    a(f"v_lshlrev_b32 v{vT1}, 4, v{vT1}")
    a(f"v_lshl_add_u32 v{vOffW3}, v{vT0}, 11, v{vT1}")
    a(f"s_lshl_b32 s{sWO3}, s{sCG}, 7")
    a(f"s_lshl_b32 s{sLW3}, s{sHH}, 13")
    a(f"s_lshl_b32 s{sT0}, s{sWM}, 11")
    a(f"s_add_u32 s{sLW3}, s{sLW3}, s{sT0}")
    STB = 16384
    SL = [131072, 147456, 0, 16384, 32768, 49152, 65536, 81920, 98304, 114688]
    def wo_dma(st):
        r = []
        for p in range(2):
            r.append([f"s_add_u32 m0, s{sLW3}, {SL[st % 10] + p*1024}", f"s_add_u32 s{sT1}, s{sWO3}, {st*64*2048 + p*8*2048}"])
            r.append([f"buffer_load_dwordx4 v{vOffW3}, s[{S_A}:{S_A+3}], s{sT1} offen lds"])
        return r

    sKVw, sLW, sCnt, sBc, sBn, sQi = 30, 31, 32, 33, 34, 19
    vRd, vIdx = 6, 7
    KF = [24, 32]; VF = [40, 48]; PP = {"A": 56, "B": 64}; L = {"A": 72, "B": 76}; ONES = 80
    SS = {"A": 96, "B": 112}; O = {"A": 128, "B": 144}; CM = {"A": 160, "B": 176}; TMP = 192
    a(f"s_lshl_b32 s{sKVw}, s{sBH}, 18")
    a(f"s_lshl_b32 s{sT0}, s{sWM}, 11")
    a(f"s_add_u32 s{sKVw}, s{sKVw}, s{sT0}")
    a(f"s_add_u32 s{sKVw}, s{sKVw}, {WS_KV}")
    a(f"s_lshl_b32 s{sLW}, s{sHH}, 13")
    a(f"v_add_u32 v{vRd}, s{sLW}, v{vOff}")
    a(f"v_add_u32 v{vRdH}, 65536, v{vRd}")
    a(f"s_add_u32 s{sLW}, s{sLW}, s{sT0}")
    a(f"s_add_u32 s{sLW}, s{sLW}, 65536")
    def setbase(dst, q):
        return [f"s_add_u32 s{dst}, s{sE}, {q}", f"s_and_b32 s{dst}, s{dst}, 7", f"s_lshl_b32 s{dst}, s{dst}, 15", f"s_add_u32 s{dst}, s{dst}, s{sKVw}"]
    for i in setbase(sBc, 1): a(i)
    for i in setbase(sBn, 2): a(i)
    a(f"s_lshl_b32 s{sT0}, s{sG}, 8")
    a(f"s_add_u32 s{sT0}, s{sT0}, {WS_F}")
    a(f"v_mov_b32 v{vC1}, s{sT0}")
    a(f"v_bfe_u32 v{vT0}, v{vLane}, 2, 1")
    a(f"v_cmp_eq_u32 vcc, 0, v{vT0}")
    a(f"v_mov_b32 v{vT1}, 0x3f803f80")
    a(f"v_and_b32 v{vT2}, 1, v{vLane}")
    a(f"v_cndmask_b32 v{ONES}, 0, v{vT1}, vcc")
    a(f"v_mov_b32 v{ONES+1}, v{ONES}")
    a(f"v_sub_u32 v{ONES+2}, v{vT1}, v{ONES}")
    a(f"v_mov_b32 v{ONES+3}, v{ONES+2}")
    a(f"v_cmp_eq_u32 vcc, 0, v{vT2}")
    a(f"v_mov_b32 v{vT1}, 0x4444")
    a(f"v_mov_b32 v{vT2}, 0xeeee")
    a(f"v_cndmask_b32 v{vIdx}, v{vT2}, v{vT1}, vcc")
    for qb in "AB":
        for i in range(16): a(f"v_mov_b32 v{O[qb]+i}, 0")
        for i in range(4): a(f"v_mov_b32 v{L[qb]+i}, 0")
    a("s_waitcnt lgkmcnt(0)")
    a("s_barrier")
    P.stamp(a)

    def rdK(fs, reg, slot, blk): return [f"ds_read_b128 v[{KF[fs]+4*m}:{KF[fs]+4*m+3}], v{reg} offset:{slot*STB + blk*4096 + m*1024}" for m in range(2)]
    def rdV(fs, reg, slot, blk): return [f"ds_read_b128 v[{VF[fs]+4*m}:{VF[fs]+4*m+3}], v{reg} offset:{slot*STB + blk*4096 + 2048 + m*1024}" for m in range(2)]
    def QK(qb, fs, c0):
        s = SS[qb]
        return [f"v_mfma_f32_32x32x16_bf16 v[{s}:{s+15}], v[{KF[fs]}:{KF[fs]+3}], v[{Q[qb]}:{Q[qb]+3}], {c0}",
                f"v_mfma_f32_32x32x16_bf16 v[{s}:{s+15}], v[{KF[fs]+4}:{KF[fs]+7}], v[{Q[qb]+4}:{Q[qb]+7}], v[{s}:{s+15}]"]
    def PV(qb, fs):
        o = O[qb]; p = PP[qb]
        return [f"v_mfma_f32_32x32x16_bf16 v[{o}:{o+15}], v[{VF[fs]}:{VF[fs]+3}], v[{p}:{p+3}], v[{o}:{o+15}]",
                f"v_mfma_f32_32x32x16_bf16 v[{o}:{o+15}], v[{VF[fs]+4}:{VF[fs]+7}], v[{p+4}:{p+7}], v[{o}:{o+15}]"]
    def SUM(qb):
        l = L[qb]; p = PP[qb]
        return [f"v_smfmac_f32_16x16x64_bf16 v[{l}:{l+3}], v[{ONES}:{ONES+3}], v[{p}:{p+7}], v{vIdx}"]
    def EXP(qb): s = SS[qb]; return [f"v_exp_f32 v{s+i}, v{s+i}" for i in range(16)]
    def CVT(qb): s = SS[qb]; p = PP[qb]; return [f"v_cvt_pk_bf16_f32 v{p+i}, v{s+2*i}, v{s+2*i+1}" for i in range(8)]
    cm = lambda qb: f"v[{CM[qb]}:{CM[qb]+15}]"
    def rowmax_to_cm(src, qb):
        a(f"v_max3_f32 v{TMP}, v{src}, v{src+1}, v{src+2}")
        for i in range(3, 15, 2): a(f"v_max3_f32 v{TMP}, v{TMP}, v{src+i}, v{src+i+1}")
        a(f"v_max_f32 v{TMP}, v{TMP}, v{src+15}")
        a(f"v_mov_b32 v{TMP+1}, v{TMP}")
        a("s_nop 1")
        a(f"v_permlane32_swap_b32 v{TMP}, v{TMP+1}")
        a("s_nop 0")
        a(f"v_max_f32 v{TMP}, v{TMP}, v{TMP+1}")
        for i in range(16): a(f"v_sub_f32 v{CM[qb]+i}, 0, v{TMP}")
    for r in rdK(0, vRd, 0, 0): a(r)
    a("s_waitcnt lgkmcnt(0)")
    for qb in "AB":
        for m in QK(qb, 0, "0"): a(m)
    a("s_nop 7"); a("s_nop 3")
    for qb in "AB": rowmax_to_cm(SS[qb], qb)

    def half(X, Y, qk, pv, valu_on, slots=()):
        e = EXP(Y) if valu_on else []; c = CVT(Y) if valu_on else []
        mq = QK(X, qk, cm(X)) if qk is not None else []
        mp = PV(X, pv) if pv is not None else []
        ms = SUM(X) if pv is not None else []
        slots = list(slots)
        def em(l, i):
            if i < len(l): a(l[i])
        def slot():
            if slots:
                grp = slots.pop(0)
                if callable(grp): grp()
                else:
                    for i in grp: a(i)
        ei = ci = 0
        for tok in ORDER.split():
            if tok == "e": em(e, ei); ei += 1
            elif tok == "c": em(c, ci); ci += 1
            elif tok[0] == "Q": em(mq, int(tok[1])); slot()
            elif tok[0] == "P": em(mp, int(tok[1])); slot()
            elif tok[0] == "S": em(ms, 0); slot()
        while slots: slot()
        if not valu_on:
            a("s_nop 7"); a("s_nop 3")
    def blockstep(n_par, first, last, slotsA=(), slotsB=()):
        ks = n_par; vs = 1 - n_par
        half("A", "B", None if last else ks, None if first else vs, not first, slotsA)
        half("B", "A", None if last else ks, None if first else vs, not last, slotsB)
    g = lambda lst: [[x] for x in lst]
    def kv_dma(rho_j, base):
        r = []
        for p in range(2):
            r.append([f"s_add_u32 m0, s{sLW}, {rho_j*STB + p*1024}", f"s_add_u32 s{sT1}, s{base}, {rho_j*8192 + p*1024}"])
            r.append([f"buffer_load_dwordx4 v{vOff}, s[{S_WS}:{S_WS+3}], s{sT1} offen sc1 lds"])
        return r
    def loc(sig): return (vRd, sig) if sig < 4 else (vRdH, sig % 4)
    def stage(cur, nxt, top, extraB=(), extraC=(), extraD=()):
        top()
        rk = rdK(0, nxt[0], nxt[1], 0); rv = rdV(1, cur[0], cur[1], 1)
        blockstep(1, False, False, slotsA=g(rk + rv), slotsB=list(extraB) + [["s_waitcnt lgkmcnt(0)"]])
        rk = rdK(1, nxt[0], nxt[1], 1); rv = rdV(0, nxt[0], nxt[1], 0)
        blockstep(0, False, False, slotsA=g(rk + rv) + list(extraC), slotsB=list(extraD))
    def top_plain(vm):
        def f():
            a(f"s_waitcnt vmcnt({vm}) lgkmcnt(0)")
            a("s_barrier")
        return f
    def c1_load(): a(f"buffer_load_dwordx4 v[{vPoll}:{vPoll+3}], v{vC1}, s[{S_WS}:{S_WS+3}], 0 offen sc1")
    def level_signal(j, vm):
        def body():
            if vm is not None: a(f"s_waitcnt vmcnt({vm})")
            a(f"v_mov_b32 v{vT1}, 1")
            lane0(lambda: a(f"buffer_atomic_add v{vT1}, v{vC1}, s[{S_WS}:{S_WS+3}], 0 offen offset:{4*j} sc1"))
        guard(f"{name}_sg{j}", f"s_cmp_eq_u32 s{sWM}, {j}", body)
    def level_check(j):
        wave0(f"{name}_ck{j}", lambda: spin(f"{name}_sp{j+1}", c1_load, [(vPoll + j, 16)]))
    def poll(j): wave0(f"{name}_pl{j}", c1_load)

    blockstep(0, True, False, g(rdK(1, vRd, 0, 1) + rdV(0, vRd, 0, 0)), slotsB=[lambda: level_stores(1)])
    def top0():
        a("s_waitcnt lgkmcnt(0)")
        level_signal(0, 0)
    stage(loc(0), loc(1), top0, extraD=[lambda: level_stores(2)])
    def top1():
        a("s_waitcnt lgkmcnt(0)")
        level_signal(1, 0)
        poll(0)
    stage(loc(1), loc(2), top1, extraD=[lambda: level_stores(3)])
    def top2():
        level_signal(2, 0)
        wave0(f"{name}_w2", lambda: a("s_waitcnt vmcnt(0)"))
        level_check(0)
        a("s_waitcnt lgkmcnt(0)")
        a("s_barrier")
        if "p3prof" not in opt: P.stamp(a)
        poll(1)
    stage(loc(2), loc(3), top2, extraB=kv_dma(0, sBc))
    def top3():
        a("s_waitcnt vmcnt(0) lgkmcnt(0)")
        level_signal(3, None)
        level_check(1)
        a("s_barrier")
        poll(2)
    stage(loc(3), loc(4), top3, extraB=kv_dma(1, sBc))
    def top4():
        a("s_waitcnt vmcnt(0) lgkmcnt(0)")
        level_check(2)
        a("s_barrier")
        poll(3)
    stage(loc(4), loc(5), top4, extraB=kv_dma(2, sBc))
    def top5():
        a("s_waitcnt vmcnt(0) lgkmcnt(0)")
        level_check(3)
        a("s_barrier")
        if "p3prof" not in opt: P.stamp(a)
    stage(loc(5), loc(6), top5, extraB=kv_dma(3, sBc), extraD=kv_dma(0, sBn))
    a(f"s_mov_b32 s{sBc}, s{sBn}")
    for i in setbase(sBn, 3): a(i)
    a(f"s_mov_b32 s{sCnt}, 0")
    a(f"s_mov_b32 s{sQi}, 4")
    a.label(f"{name}_loop")
    for i in range(4):
        j = (2 + i) % 4
        exB = kv_dma(i + 1, sBc) if i < 3 else kv_dma(0, sBn)
        exD = []
        if i == 3:
            exD = [[f"s_mov_b32 s{sBc}, s{sBn}", f"s_add_u32 s{sBn}, s{sE}, s{sQi}"], [f"s_and_b32 s{sBn}, s{sBn}, 7", f"s_lshl_b32 s{sBn}, s{sBn}, 15"],
                   [f"s_add_u32 s{sBn}, s{sBn}, s{sKVw}", f"s_add_u32 s{sQi}, s{sQi}, 1"], [f"s_add_u32 s{sCnt}, s{sCnt}, 1"], [f"s_cmp_lt_u32 s{sCnt}, 5"]]
        stage((vRdH, j), (vRdH, (j+1) % 4), top_plain(2), extraB=exB, extraD=exD)
    a(f"s_cbranch_scc1 {name}_loop")
    stage(loc(26), loc(27), top_plain(2), extraB=kv_dma(1, sBc), extraD=wo_dma(0))
    stage(loc(27), loc(28), top_plain(4), extraB=kv_dma(2, sBc), extraD=wo_dma(1))
    stage(loc(28), loc(29), top_plain(6), extraB=kv_dma(3, sBc), extraD=wo_dma(2))
    stage(loc(29), loc(30), top_plain(6), extraB=wo_dma(3), extraD=wo_dma(4))
    stage(loc(30), loc(31), top_plain(6), extraB=wo_dma(5))
    a("s_waitcnt lgkmcnt(0)")
    blockstep(1, False, False, slotsA=g(rdV(1, vRdH, 3, 1)))
    a("s_waitcnt lgkmcnt(0)")
    half("A", "B", None, 1, True)
    a("s_nop 1")
    half("B", "A", None, 1, False)
    P.stamp(a)
    def normalise():
        for qb in "AB": a(f"v_add_f32 v{L[qb]}, v{L[qb]}, v{L[qb]+1}")
        for qb in "AB":
            a(f"v_rcp_f32 v{TMP}, v{L[qb]}")
            a("s_nop 0")
            for i in range(16): a(f"v_mul_f32 v{O[qb]+i}, v{O[qb]+i}, v{TMP}")
    a("s_nop 7")
    normalise()
    a(f"v_mov_b32 v{TMP+1}, 0")
    for qb in "AB":
        for i in range(16): a(f"v_fma_f32 v{TMP+1}, v{O[qb]+i}, 0, v{TMP+1}")
    a(f"s_mov_b32 s{sT0}, {f32(2.0**40)}")
    a(f"v_cmp_nle_f32 vcc, v{L['A']}, s{sT0}")
    a(f"v_cmp_nle_f32 s[16:17], v{L['B']}, s{sT0}")
    a(f"v_cmp_u_f32 s[18:19], v{TMP+1}, v{TMP+1}")
    a("s_or_b64 vcc, vcc, s[16:17]")
    a("s_or_b64 vcc, vcc, s[18:19]")
    a(f"s_cbranch_vccnz {name}_fallback")
    a.label(f"{name}_store_o")
    a(f"s_lshl_b32 s{sT0}, s{sE}, 3")
    a(f"s_lshl_b32 s{sT1}, s{sWM}, 1")
    a(f"s_add_u32 s{sT0}, s{sT0}, s{sT1}")
    a(f"s_lshl_b32 s{sT0}, s{sT0}, 17")
    a(f"s_lshl_b32 s{sT1}, s{sBH}, 11")
    a(f"s_add_u32 s{sT0}, s{sT0}, s{sT1}")
    a(f"s_add_u32 s33, s{sT0}, {WS_OF}")
    for qi, qb in enumerate("AB"):
        p = PP[qb]
        for i in range(8): a(f"v_cvt_pk_bf16_f32 v{p+i}, v{O[qb]+2*i}, v{O[qb]+2*i+1}")
        a(f"s_add_u32 s{sT0}, s33, {qi*131072}")
        for m in range(2):
            a(f"buffer_store_dwordx4 v[{p+4*m}:{p+4*m+3}], v{vOff}, s[{S_WS}:{S_WS+3}], s{sT0} offen offset:{m*1024} sc1")

    sOF = 30
    OFR = 16; NBO = 8; WFR = OFR + NBO*16; ACC3 = WFR + 64; vG3 = 242
    vAW0, vAW1, vAWm0, vAWm1, vAWh0, vAWh1, vC2, vC2p = 8, 9, 10, 11, 12, 13, 14, 15
    tr_pattern(vAW0, 2, None)
    a(f"s_lshl_b32 s{sT0}, s{sHH}, 13")
    a(f"v_add_u32 v{vAW0}, s{sT0}, v{vAW0}")
    a(f"v_xor_b32 v{vAW1}, 64, v{vAW0}")
    a(f"v_add_u32 v{vAWm0}, 65536, v{vAW0}")
    a(f"v_add_u32 v{vAWm1}, 65536, v{vAW1}")
    a(f"v_add_u32 v{vAWh0}, 131072, v{vAW0}")
    a(f"v_add_u32 v{vAWh1}, 131072, v{vAW1}")
    a(f"s_lshl_b32 s{sT0}, s{sTG}, 2")
    a(f"s_add_u32 s{sT0}, s{sT0}, s{sWM}")
    a(f"s_lshl_b32 s{sOF}, s{sT0}, 17")
    a(f"s_lshl_b32 s{sT1}, s{sHH}, 16")
    a(f"s_add_u32 s{sOF}, s{sOF}, s{sT1}")
    a(f"s_add_u32 s{sOF}, s{sOF}, {WS_OF}")
    a(f"s_lshl_b32 s{sT0}, s{sE}, 10")
    a(f"s_add_u32 s{sT0}, s{sT0}, {WS_F + 32*256}")
    a(f"v_lshlrev_b32 v{vC2}, 8, v{vLane}")
    a(f"v_add_u32 v{vC2}, s{sT0}, v{vC2}")
    a(f"s_lshl_b32 s{sT0}, s{sEP}, 2")
    a(f"s_bfe_u32 s{sT1}, s2, 0x20005")
    a(f"s_add_u32 s{sT0}, s{sT0}, s{sT1}")
    a(f"s_lshl_b32 s{sT0}, s{sT0}, 8")
    a(f"s_add_u32 s{sT0}, s{sT0}, {WS_F + 32*256}")
    a(f"v_mov_b32 v{vC2p}, s{sT0}")
    a("s_waitcnt vmcnt(0)")
    a("s_barrier")
    P.stamp(a)
    def c2_load(): a(f"buffer_load_dword v{vPoll}, v{vC2p}, s[{S_WS}:{S_WS+3}], 0 offen sc1")
    def sig2():
        a(f"v_mov_b32 v{vT1}, 1")
        lane0(lambda: a(f"buffer_atomic_add v{vT1}, v{vC2}, s[{S_WS}:{S_WS+3}], 0 offen sc1"), 4)
    wave0(f"{name}_sig2", sig2)
    for st in range(6, 10):
        for grp in wo_dma(st):
            for i in grp: a(i)
    for i in range(32): a(f"v_mov_b32 v{ACC3+i}, 0")
    def wait2():
        c2_load()
        a("s_waitcnt vmcnt(0)")
        spin(f"{name}_spin2", c2_load, [(vPoll, 32)])
    wave0(f"{name}_wt2", wait2)
    a("s_waitcnt vmcnt(0)")
    a("s_barrier")
    P.stamp(a)
    ops = []
    def issueO(st):
        o = OFR + (st % NBO)*16
        a(f"s_add_u32 s{sT0}, s{sOF}, {st*4096}")
        for c in range(4):
            a(f"buffer_load_dwordx4 v[{o+4*c}:{o+4*c+3}], v{vOff}, s[{S_WS}:{S_WS+3}], s{sT0} offen offset:{c*1024}" + ("" if "plainO" in opt else " sc1"))
            ops.append(("O", st))
    def issueW(st):
        for grp in wo_dma(st):
            for i in grp: a(i)
        ops.append(("W", st)); ops.append(("W", st))
    def need(tags):
        last = max([i for i, t in enumerate(ops) if t in tags] + [-1])
        return len(ops) - 1 - last
    D0 = 2 if "d0" not in "".join(opt) else int([x[2:] for x in opt if x.startswith("d0")][0])
    nxtO = 0
    for st in range(D0): issueO(st); nxtO += 1
    a(f"v_lshrrev_b32 v{vG3+5}, 3, v0")
    a(f"s_lshl_b32 s{sT0}, s{sTG}, 7")
    a(f"v_add_u32 v{vG3+6}, s{sT0}, v{vG3+5}")
    a(f"v_lshlrev_b32 v{vG3}, 2, v{vG3+6}")
    a(f"v_add_u32 v{vG3}, {WS_G}, v{vG3}")
    a(f"buffer_load_dword v{vG3+1}, v{vG3}, s[{S_WS}:{S_WS+3}], 0 offen sc1"); ops.append(("G", 0))
    a(f"buffer_load_dword v{vG3+2}, v{vG3}, s[{S_WS}:{S_WS+3}], 0 offen offset:256 sc1"); ops.append(("G", 0))
    def rdW(st):
        slot = SL[st % 10]; r = []
        for c in range(4):
            for ct in range(2):
                for u in range(2):
                    d = WFR + (st & 1)*32 + c*8 + ct*4 + 2*u
                    off = (32*(c >> 1) + 16*(c & 1) + 8*u)*128
                    if slot >= 131072: ad = (vAWh0, vAWh1)[ct]; off += slot - 131072
                    elif slot >= 65536: ad = (vAWm0, vAWm1)[ct]; off += slot - 65536
                    else: ad = (vAW0, vAW1)[ct]; off += slot
                    r.append(f"ds_read_b64_tr_b16 v[{d}:{d+1}], v{ad} offset:{off}")
        return r
    for r in rdW(0)[:8]: a(r)
    a("s_waitcnt lgkmcnt(4)")
    for r in rdW(0)[8:]: a(r)
    for st in range(16):
        tags = {('O', st)}
        if st == 9: tags |= {('W', 10), ('W', 11), ('W', 12)}
        if st == 12: tags |= {('W', 13), ('W', 14), ('W', 15)}
        a(f"s_waitcnt vmcnt({need(tags)}) lgkmcnt(0)")
        if "p3prof" in opt and st in (0, 4, 8, 12): P.stamp(a)
        if st in (3, 6, 9, 12): a("s_barrier")
        pend = []
        if st == 3: pend += [lambda w=w: issueW(w) for w in (10, 11, 12)]
        if st == 6: pend += [lambda w=w: issueW(w) for w in (13, 14, 15)]
        for _ in range(2):
            if nxtO < 16 and nxtO < st + NBO:
                pend.append(lambda o=nxtO: issueO(o)); nxtO += 1
        rs = rdW(st + 1) if st < 15 else []
        k = 0
        for c in range(4):
            o = OFR + (st % NBO)*16 + 4*c
            for ct in range(2):
                w = WFR + (st & 1)*32 + c*8 + ct*4; d = ACC3 + ct*16
                a(f"v_mfma_f32_32x32x16_bf16 v[{d}:{d+15}], v[{w}:{w+3}], v[{o}:{o+3}], v[{d}:{d+15}]")
                if k == 4 and rs: a("s_waitcnt lgkmcnt(8)")
                if k < 6:
                    for _ in range(3 if k < 4 else 2):
                        if rs: a(rs.pop(0))
                if pend and k >= 1: pend.pop(0)()
                k += 1
        for f in pend: f()
        assert not rs
    P.stamp(a)
    RSTR = 272; AREA = 128*RSTR
    a("s_barrier")
    a(f"v_and_b32 v{vT0}, 31, v{vLane}")
    a(f"s_lshl_b32 s{sT0}, s{sWM}, 5")
    a(f"v_add_u32 v{vT0}, s{sT0}, v{vT0}")
    a(f"v_mul_u32_u24 v{vT0}, {RSTR}, v{vT0}")
    a(f"v_lshrrev_b32 v{vT1}, 5, v{vLane}")
    a(f"v_lshl_add_u32 v{vT0}, v{vT1}, 4, v{vT0}")
    a(f"s_mul_i32 s{sT0}, s{sHH}, {AREA}")
    a(f"v_add_u32 v{vT0}, s{sT0}, v{vT0}")
    a(f"v_and_b32 v{vG3+3}, 7, v0")
    a(f"v_mul_u32_u24 v{vG3+4}, {RSTR}, v{vG3+5}")
    a(f"v_lshl_add_u32 v{vG3+4}, v{vG3+3}, 5, v{vG3+4}")
    a(f"v_lshlrev_b32 v{vG3+5}, 11, v{vG3+6}")
    a(f"v_lshl_add_u32 v{vG3+5}, v{vG3+3}, 4, v{vG3+5}")
    a(f"s_lshl_b32 s{sT1}, s{sCG}, 7")
    a("s_nop 1")
    for ct in range(2):
        for q in range(4):
            d = ACC3 + ct*16 + 4*q
            a(f"ds_write_b128 v{vT0}, v[{d}:{d+3}] offset:{ct*128 + q*32}")
    a("s_waitcnt lgkmcnt(0)")
    a("s_barrier")
    for hf in range(2):
        ra, rb = OFR + hf*16, OFR + hf*16 + 8
        off = hf*64*RSTR
        a(f"ds_read_b128 v[{ra}:{ra+3}], v{vG3+4} offset:{off}")
        a(f"ds_read_b128 v[{ra+4}:{ra+7}], v{vG3+4} offset:{off+16}")
        a(f"ds_read_b128 v[{rb}:{rb+3}], v{vG3+4} offset:{off+AREA}")
        a(f"ds_read_b128 v[{rb+4}:{rb+7}], v{vG3+4} offset:{off+AREA+16}")
    a("s_waitcnt vmcnt(0) lgkmcnt(0)")
    for hf in range(2):
        ra, rb = OFR + hf*16, OFR + hf*16 + 8
        gg = vG3 + 1 + hf
        a(f"v_sub_f32 v{vG3+7}, 1.0, v{gg}")
        a(f"v_cvt_pk_bf16_f32 v{vG3+7}, v{vG3+7}, v{vG3+7}")
        a(f"v_lshlrev_b32 v{vG3+7}, 16, v{vG3+7}")
        for i in range(8): a(f"v_mul_f32 v{ra+i}, v{ra+i}, v{gg}")
        for i in range(8): a(f"v_fmac_f32 v{ra+i}, v{rb+i}, v{vG3+7}")
        p = OFR + 32 + hf*4
        for i in range(4): a(f"v_cvt_pk_bf16_f32 v{p+i}, v{ra+2*i}, v{ra+2*i+1}")
        a(f"s_add_u32 s{sT0}, s{sT1}, {hf*64*2048}")
        a(f"buffer_store_dwordx4 v[{p}:{p+3}], v{vG3+5}, s[{S_B}:{S_B+3}], s{sT0} offen")
    if prof:
        a("s_waitcnt vmcnt(0)")
        P.stamp(a)
    P.flush(a, sW_, pWS, pWS+1, name)
    a.label(f"{name}_end")
    a("s_endpgm")

    a.label(f"{name}_fallback")
    sFS = 33
    a("s_waitcnt vmcnt(0)")
    for qb in "AB":
        for i in range(16): a(f"v_mov_b32 v{CM[qb]+i}, 0xff800000")
    a(f"s_lshl_b32 s{sT0}, s{sWM}, 11")
    a(f"s_sub_u32 s{sFS}, s{sKVw}, s{sT0}")
    a(f"s_mov_b32 s{sCnt}, 0")
    a.label(f"{name}_fb_max")
    for m in range(2):
        a(f"buffer_load_dwordx4 v[{KF[0]+4*m}:{KF[0]+4*m+3}], v{vOff}, s[{S_WS}:{S_WS+3}], s{sFS} offen offset:{m*1024} sc1")
    a("s_waitcnt vmcnt(0)")
    for qb in "AB":
        for m in QK(qb, 0, "0"): a(m)
    a("s_nop 7"); a("s_nop 3")
    for qb in "AB":
        for i in range(16): a(f"v_max_f32 v{CM[qb]+i}, v{CM[qb]+i}, v{SS[qb]+i}")
    a(f"s_add_u32 s{sFS}, s{sFS}, 4096")
    a(f"s_add_u32 s{sCnt}, s{sCnt}, 1")
    a(f"s_cmp_lt_u32 s{sCnt}, 64")
    a(f"s_cbranch_scc1 {name}_fb_max")
    for qb in "AB": rowmax_to_cm(CM[qb], qb)
    for qb in "AB":
        for i in range(16): a(f"v_mov_b32 v{O[qb]+i}, 0")
        for i in range(4): a(f"v_mov_b32 v{L[qb]+i}, 0")
    a(f"s_sub_u32 s{sFS}, s{sFS}, {64*4096}")
    a(f"s_mov_b32 s{sCnt}, 0")
    a.label(f"{name}_fb_pv")
    for m in range(2):
        a(f"buffer_load_dwordx4 v[{KF[0]+4*m}:{KF[0]+4*m+3}], v{vOff}, s[{S_WS}:{S_WS+3}], s{sFS} offen offset:{m*1024} sc1")
        a(f"buffer_load_dwordx4 v[{VF[0]+4*m}:{VF[0]+4*m+3}], v{vOff}, s[{S_WS}:{S_WS+3}], s{sFS} offen offset:{2048+m*1024} sc1")
    a("s_waitcnt vmcnt(0)")
    for qb in "AB":
        for m in QK(qb, 0, cm(qb)): a(m)
    a("s_nop 7"); a("s_nop 3")
    for qb in "AB":
        for i in EXP(qb): a(i)
    a("s_nop 0")
    for qb in "AB":
        for i in CVT(qb): a(i)
    a("s_nop 1")
    for qb in "AB":
        for m in PV(qb, 0): a(m)
        for m in SUM(qb): a(m)
    a(f"s_add_u32 s{sFS}, s{sFS}, 4096")
    a(f"s_add_u32 s{sCnt}, s{sCnt}, 1")
    a(f"s_cmp_lt_u32 s{sCnt}, 64")
    a(f"s_cbranch_scc1 {name}_fb_pv")
    a("s_nop 7"); a("s_nop 7")
    normalise()
    a(f"s_branch {name}_store_o")
    return a.text(), 252, 163840
```

```python
import sys, os
sys.path.insert(0, os.path.dirname(__file__))
from common import *
from asmlib import check_kernel
import fused
def header_single(grid, block, lds):
    ref = open("cdna_kernels/%s.s.ref" % NAME).read().split("\n")
    hdr = [l for l in ref if l.startswith(";") and "@launch" not in l and "Override launch" not in l and "grid=ceil" not in l][:12]
    return "\n".join(hdr) + f"\n; @launch grid=({grid},1,1) block=({block},1,1) lds={lds}\n" + '.amdgcn_target "amdgcn-amd-amdhsa--gfx950"\n'
if __name__ == "__main__":
    out = sys.argv[1]
    prof = "cyc" if "cyc" in sys.argv else ("prof" in sys.argv)
    name = NAME + "_kernel"
    t, nv, lds = fused.gen_fused(name, prof=prof, opt=[x[2:] for x in sys.argv if x.startswith("x:")])
    errs, vmax, smax = check_kernel(t, name, ((), (name + "_fallback",), tuple(name+x for x in ("_nz","_tx","_ni","_np","_chk0","_st0","_st1","_st2","_st3","_sg0","_sg1","_sg2","_sg3","_ck0","_ck1","_ck2","_ck3","_pl0","_pl1","_pl2","_pl3","_w2","_sig2","_wt2"))))
    print(f"{name}: vmax={vmax} smax={smax} lines={t.count(chr(10))} errs={len(errs)}")
    for e in errs[:30]: print(e)
    assert vmax < nv and smax < 102
    open(out, "w").write(header_single(256, 512, lds) + t + kernel_desc(name, nv, 102))
    print("wrote", out)
```

```python
from asmlib import Asm
NAME = "gated_mix__mha_block__softmax_full_mha__prompt"
KA_X, KA_WA, KA_WOA, KA_BX, KA_WB, KA_WOB, KA_GW, KA_OUT, KA_DBG, KA_WS = 0, 8, 16, 24, 32, 40, 48, 56, 64, 72
WS_QF  = 0
WS_KV  = 8 << 20
WS_OF  = 24 << 20
WS_G   = 32 << 20
WS_F   = 33 << 20
WS_SIZE = (33 << 20) + 16384
QSCALE = 1.4426950408889634 * (32 ** -0.5)
import struct
def f32(x): return "0x%08x" % struct.unpack("<I", struct.pack("<f", x))[0]

def srd(a, s, lo, hi, nbytes):
    a(f"s_mov_b32 s{s}, s{lo}")
    a(f"s_mov_b32 s{s+1}, s{hi}")
    a(f"s_mov_b32 s{s+2}, {nbytes}")
    a(f"s_mov_b32 s{s+3}, 0x20000")

def kernel_head(a, name):
    a(".text")
    a(f".globl {name}")
    a(".p2align 8")
    a(f".type {name},@function")
    a.label(name)

def kernel_desc(name, nvgpr, nsgpr=96):
    acc = (nvgpr + 3)//4*4
    return f""".section .rodata,"a"
.p2align 6
.amdhsa_kernel {name}
  .amdhsa_next_free_vgpr {nvgpr}
  .amdhsa_next_free_sgpr {nsgpr}
  .amdhsa_accum_offset {acc}
  .amdhsa_group_segment_fixed_size 0
  .amdhsa_kernarg_size 80
  .amdhsa_user_sgpr_count 2
  .amdhsa_user_sgpr_kernarg_segment_ptr 1
  .amdhsa_system_sgpr_workgroup_id_x 1
.end_amdhsa_kernel
"""
def vr(a, n=1): return f"v{a}" if n == 1 else f"v[{a}:{a+n-1}]"
def sr(a, n=1): return f"s{a}" if n == 1 else f"s[{a}:{a+n-1}]"

WS_T = 40 << 20
class Prof:
    def __init__(self, on, kidx):
        self.on = on; self.kidx = kidx; self.n = 0
    def stamp(self, a, wait=True):
        if not self.on: return
        i = self.n; self.n += 1
        assert i < 14
        a(f"{'s_memtime' if self.on == 'cyc' else 's_memrealtime'} s[{64+2*i}:{65+2*i}]")
        if wait: a("s_waitcnt lgkmcnt(0)")
    def cyc(self, a):
        if not self.on: return
        i = self.n; self.n += 1
        a(f"s_memtime s[{64+2*i}:{65+2*i}]")
        a("s_waitcnt lgkmcnt(0)")
    def flush_dbg(self, a, swave, sdbg, name):
        a("s_waitcnt lgkmcnt(0)")
        a(f"s_cmp_lg_u32 s{swave}, 0")
        a(f"s_cbranch_scc1 {name}_noprof")
        a("v_mov_b32 v1, 0")
        a("s_mov_b64 exec, 1")
        a("s_sub_u32 s63, 0, s64")
        a("v_mov_b32 v2, s63")
        a(f"buffer_atomic_umax v2, v1, s[{sdbg}:{sdbg+3}], 0 offen offset:4 sc1")
        for i in range(self.n):
            a(f"v_mov_b32 v2, s{64+2*i}")
            a("s_nop 1")
            a(f"buffer_atomic_umax v2, v1, s[{sdbg}:{sdbg+3}], 0 offen offset:{8+4*i} sc1")
            a("s_nop 1")
        a.label(f"{name}_noprof")
    def flush(self, a, swave, wslo, wshi, name):
        if not self.on: return
        a("s_waitcnt lgkmcnt(0)")
        a(f"s_mov_b32 s92, s{wslo}")
        a(f"s_mov_b32 s93, s{wshi}")
        a(f"s_mov_b32 s94, {64 << 20}")
        a(f"s_mov_b32 s95, 0x20000")
        a(f"s_lshl_b32 s63, s2, 3")
        a(f"s_add_u32 s63, s63, s{swave}")
        a(f"s_lshl_b32 s63, s63, 6")
        a(f"s_add_u32 s63, s63, {WS_T + self.kidx*256*8*64}")
        a("v_mov_b32 v1, 0")
        for i in range(self.n):
            a(f"v_mov_b32 v2, s{64+2*i}")
            a(f"buffer_store_dword v2, v1, s[92:95], s63 offen offset:{4*i}")
```

```python
from common import *

ORDER = "e e Q0 e e c e e c Q1 e e c e e c P0 e e c e e c P1 e e c S c"
SPIN = 6000

def gen_fused(name, prof=False, opt=()):
    a = Asm()
    P = Prof(prof, 0)
    R = 20; RB = R*8192
    kernel_head(a, name)
    S_A, S_B, S_WS, S_GW, S_DBG = 4, 8, 12, 16, 36
    sW_, sWM, sHH, sG, sE, sB, sT, sBH = 20, 21, 22, 23, 24, 25, 26, 27
    sT0, sT1 = 28, 29
    sCG, sEP, sWO3, sLW3, sTG = 46, 47, 60, 61, 62
    pX, pWA, pWOA, pWB, pWOB, pGW, pOUT, pDBG, pWS = 40, 42, 44, 48, 50, 52, 54, 56, 58
    vLane, vT0, vT1, vT2, vOff = 1, 2, 3, 4, 5
    vOffW3, vRdH, vC1, vInitA, vPoll, vTouch, vTouchA = 240, 241, 242, 243, 244, 248, 249
    KVP = 208
    def lane0(body, nl=1):
        a(f"v_cmp_gt_u32 vcc, {nl}, v{vLane}")
        a(f"s_and_saveexec_b64 s[16:17], vcc")
        body()
        a(f"s_mov_b64 exec, s[16:17]")
    def guard(label, cmp, body):
        a(cmp)
        a(f"s_cbranch_scc0 {label}")
        body()
        a.label(label)

    a("s_cmp_ge_u32 s2, 256")
    a(f"s_cbranch_scc1 {name}_end")
    P.stamp(a, wait=False)
    if "padto" in "".join(opt): a("s_memrealtime s[64:65]")
    a(f"s_load_dwordx4 s[40:43], s[0:1], 0")
    a(f"s_load_dwordx2 s[44:45], s[0:1], 16")
    a(f"s_load_dwordx4 s[48:51], s[0:1], 32")
    a(f"s_load_dwordx4 s[52:55], s[0:1], 48")
    a(f"s_load_dwordx4 s[56:59], s[0:1], 64")
    a(f"v_lshrrev_b32 v{vT0}, 6, v0")
    a(f"v_and_b32 v{vLane}, 63, v0")
    a(f"v_readfirstlane_b32 s{sW_}, v{vT0}")
    a(f"s_and_b32 s{sG}, s2, 31")
    a(f"s_lshr_b32 s{sE}, s2, 5")
    a(f"s_lshr_b32 s{sB}, s{sG}, 4")
    a(f"s_and_b32 s{sT}, s{sG}, 15")
    a(f"s_and_b32 s{sWM}, s{sW_}, 3")
    a(f"s_lshr_b32 s{sHH}, s{sW_}, 2")
    a(f"s_lshl_b32 s{sBH}, s{sB}, 5")
    a(f"s_lshl_b32 s{sT0}, s{sT}, 1")
    a(f"s_add_u32 s{sBH}, s{sBH}, s{sT0}")
    a(f"s_add_u32 s{sBH}, s{sBH}, s{sHH}")
    a(f"v_lshlrev_b32 v{vOff}, 4, v{vLane}")

    sW1024, sXK, sWK, sXB, sWM8, sGOFF = 30, 31, 32, 33, 34, 35
    vOffX, vOffW, vAX, vAW, vCX, vCW = 10, 11, 12, 16, 17, 21
    FR = [24, 44]; ACC = 64; vG = 160
    def accreg(y, tb): return ACC + (y*2 + tb)*16
    a(f"s_lshl_b32 s{sW1024}, s{sW_}, 10")
    a(f"s_lshl_b32 s{sWM8}, s{sWM}, 13")
    a(f"v_lshrrev_b32 v{vT0}, 3, v{vLane}")
    a(f"s_lshl_b32 s{sT0}, s{sW_}, 3")
    a(f"v_add_u32 v{vT0}, s{sT0}, v{vT0}")
    a(f"v_lshrrev_b32 v{vT1}, 1, v{vT0}")
    a(f"v_and_b32 v8, 7, v{vT1}")
    a(f"v_and_b32 v{vT2}, 7, v{vLane}")
    a(f"v_xor_b32 v8, v8, v{vT2}")
    a(f"v_lshlrev_b32 v8, 4, v8")
    a(f"v_lshl_add_u32 v{vOffX}, v{vT0}, 11, v8")
    a(f"v_and_b32 v{vT1}, 1, v{vT1}")
    a(f"v_lshlrev_b32 v{vT1}, 2, v{vT1}")
    a(f"v_xor_b32 v{vT1}, v{vT1}, v{vT2}")
    a(f"v_lshlrev_b32 v{vT1}, 4, v{vT1}")
    a(f"v_mul_u32_u24 v{vT0}, 6144, v{vT0}")
    a(f"v_add_u32 v{vOffW}, v{vT0}, v{vT1}")
    a(f"s_lshl_b32 s{sXK}, s{sE}, 19")
    a(f"s_lshl_b32 s{sWK}, s{sT}, 7")
    a("s_waitcnt lgkmcnt(0)")
    srd(a, S_A, pX, pX+1, 2048*1024*2)
    a(f"s_cmp_eq_u32 s{sB}, 0")
    a(f"s_cselect_b32 s{S_B}, s{pWA}, s{pWB}")
    a(f"s_cselect_b32 s{S_B+1}, s{pWA+1}, s{pWB+1}")
    a(f"s_mov_b32 s{S_B+2}, {1024*3072*2}")
    a(f"s_mov_b32 s{S_B+3}, 0x20000")
    srd(a, S_WS, pWS, pWS+1, WS_SIZE)
    srd(a, S_DBG, pDBG, pDBG+1, 256)
    a(f"s_lshl_b32 s{sT0}, s{sW_}, 8")
    a(f"s_add_u32 s{sT0}, s{sT0}, s2")
    def zero_line():
        for i in range(4): a(f"v_mov_b32 v{24+i}, 0")
        a(f"s_lshl_b32 s{sT0}, s2, 8")
        a(f"s_add_u32 s{sT0}, s{sT0}, {WS_F}")
        a(f"v_mov_b32 v28, s{sT0}")
        lane0(lambda: a(f"buffer_store_dwordx4 v[24:27], v28, s[{S_WS}:{S_WS+3}], 0 offen sc1"))
    guard(f"{name}_nz", f"s_cmp_lt_u32 s{sT0}, 64", zero_line)
    def dma(u):
        st, r = divmod(u, 7)
        slot = (u % R)*8192
        a(f"s_add_u32 m0, s{sW1024}, {slot}")
        if r < 4:
            a(f"s_add_u32 s{sT0}, s{sXK}, {r*131072 + st*128}")
            a(f"buffer_load_dwordx4 v{vOffX}, s[{S_A}:{S_A+3}], s{sT0} offen lds")
        else:
            a(f"s_add_u32 s{sT0}, s{sWK}, {st*64*6144 + (r-4)*2048}")
            a(f"buffer_load_dwordx4 v{vOffW}, s[{S_B}:{S_B+3}], s{sT0} offen lds")
    NU = 16*7
    for u in range(R-7): dma(u)
    PD = int(([x[2:] for x in opt if x.startswith("pd")] + ["0"])[0])
    S_T = 96; sTB, sTS, sTon = 100, 101, 63
    vTch = 250
    if PD:
        a(f"s_cmp_lt_u32 s2, 32")
        a(f"s_cselect_b32 s{sT0}, 1, 0")
        a(f"s_sub_u32 s{sT1}, s2, 32")
        a(f"s_cmp_ge_u32 s{sT1}, 48")
        a(f"s_cselect_b32 s{S_T}, s{pWB}, s{pWA}")
        a(f"s_cselect_b32 s{S_T+1}, s{pWB+1}, s{pWA+1}")
        a(f"s_cselect_b32 s{sTS}, 48, 0")
        a(f"s_sub_u32 s{sT1}, s{sT1}, s{sTS}")
        a(f"s_lshl_b32 s{sTB}, s{sT1}, 7")
        a(f"s_mov_b32 s{sTS}, {64*6144}")
        a(f"s_mov_b32 s{S_T+2}, {1024*3072*2}")
        a(f"s_mov_b32 s{S_T+3}, 0x20000")
        a(f"v_mul_u32_u24 v{vTch}, 6144, v{vLane}")
        def as_x():
            a(f"s_mov_b32 s{S_T}, s{pX}")
            a(f"s_mov_b32 s{S_T+1}, s{pX+1}")
            a(f"s_mov_b32 s{S_T+2}, {2048*1024*2}")
            a(f"s_lshl_b32 s{sTB}, s2, 17")
            a(f"s_mov_b32 s{sTS}, 128")
            a(f"v_lshlrev_b32 v{vTch}, 11, v{vLane}")
        guard(f"{name}_tx", f"s_cmp_eq_u32 s{sT0}, 1", as_x)
        a(f"s_lshr_b32 s{sT0}, s2, 7")
        a(f"s_lshl_b32 s{sT0}, s{sT0}, 3")
        a(f"s_add_u32 s{sT0}, s{sT0}, 7")
        a(f"s_cmp_eq_u32 s{sT0}, s{sW_}")
        a(f"s_cselect_b32 s{sTon}, 1, 0")
    tcount = [0]
    def touch(st):
        if not PD or st > 15: return
        def body():
            a(f"s_mul_i32 s{sT0}, s{sTS}, {st}")
            a(f"s_add_u32 s{sT0}, s{sT0}, s{sTB}")
            a(f"buffer_load_dword v251, v{vTch}, s[{S_T}:{S_T+3}], s{sT0} offen")
        tcount[0] += 1
        guard(f"{name}_tc{tcount[0]}", f"s_cmp_eq_u32 s{sTon}, 1", body)
    for st in range(2, PD): touch(st)
    srd(a, S_GW, pGW, pGW+1, 2048)
    a(f"s_lshl_b32 s{sT0}, s{sE}, 5")
    a(f"s_add_u32 s{sT0}, s{sT0}, s{sG}")
    a(f"s_lshl_b32 s{sT0}, s{sT0}, 3")
    a(f"s_add_u32 s{sT0}, s{sT0}, s{sW_}")
    a(f"s_lshl_b32 s{sGOFF}, s{sT0}, 2")
    a(f"s_lshl_b32 s{sT0}, s{sT0}, 11")
    a(f"v_lshlrev_b32 v{vT1}, 5, v{vLane}")
    a(f"buffer_load_dwordx4 v[{vG}:{vG+3}], v{vT1}, s[{S_A}:{S_A+3}], s{sT0} offen")
    a(f"buffer_load_dwordx4 v[{vG+4}:{vG+7}], v{vT1}, s[{S_A}:{S_A+3}], s{sT0} offen offset:16")
    a(f"buffer_load_dwordx4 v[{vG+8}:{vG+11}], v{vT1}, s[{S_GW}:{S_GW+3}], 0 offen")
    a(f"buffer_load_dwordx4 v[{vG+12}:{vG+15}], v{vT1}, s[{S_GW}:{S_GW+3}], 0 offen offset:16")
    a(f"v_and_b32 v{vT0}, 31, v{vLane}")
    a(f"v_lshrrev_b32 v{vT1}, 5, v{vLane}")
    a(f"v_lshrrev_b32 v{vT2}, 1, v{vT0}")
    a(f"v_and_b32 v{vT2}, 7, v{vT2}")
    a(f"v_xor_b32 v{vT1}, v{vT1}, v{vT2}")
    a(f"v_lshlrev_b32 v{vT1}, 4, v{vT1}")
    a(f"v_lshl_add_u32 v{vAX}, v{vT0}, 7, v{vT1}")
    for s in range(1, 4): a(f"v_xor_b32 v{vAX+s}, {32*s}, v{vAX}")
    def tr_pattern(dst, ksh, hsel):
        a(f"v_and_b32 v{vT0}, 15, v{vLane}")
        a(f"v_lshrrev_b32 v{vT1}, 5, v{vLane}")
        a(f"v_lshlrev_b32 v{vT1}, {ksh}, v{vT1}")
        a(f"v_lshrrev_b32 v{vT2}, 2, v{vT0}")
        a(f"v_add_u32 v{vT1}, v{vT1}, v{vT2}")
        a(f"v_lshlrev_b32 v{dst}, 7, v{vT1}")
        a(f"v_lshrrev_b32 v{vT1}, 3, v{vT0}")
        if hsel is not None: a(f"v_xor_b32 v{vT1}, s{hsel}, v{vT1}")
        a(f"v_lshl_add_u32 v{dst}, v{vT1}, 6, v{dst}")
        a(f"v_bfe_u32 v{vT1}, v{vLane}, 4, 1")
        a(f"v_lshl_add_u32 v{dst}, v{vT1}, 5, v{dst}")
        a(f"v_and_b32 v{vT1}, 3, v{vT0}")
        a(f"v_lshl_add_u32 v{dst}, v{vT1}, 3, v{dst}")
    tr_pattern(vAW, 3, sHH)
    for i in range(96): a(f"v_mov_b32 v{ACC+i}, 0")
    lt = int(([x[2:] for x in opt if x.startswith("lt")] + ["2"])[0])
    a(f"s_and_b32 s{sT0}, s2, {(16 >> lt) - 1 & 7}")
    a(f"s_lshl_b32 s{sT0}, s{sT0}, {lt}")
    a(f"s_lshr_b32 s{sT1}, s2, 3")
    a(f"s_and_b32 s{sTG}, s{sT1}, {(1 << lt) - 1}")
    a(f"s_add_u32 s{sTG}, s{sTG}, s{sT0}")
    a(f"s_lshr_b32 s{sCG}, s{sT1}, {lt}")
    a(f"s_and_b32 s{sT0}, s2, 7")
    a(f"s_lshr_b32 s{sT0}, s{sT0}, {4 - lt}")
    a(f"s_lshl_b32 s{sT0}, s{sT0}, {5 - lt}")
    a(f"s_add_u32 s{sCG}, s{sCG}, s{sT0}")
    a(f"s_lshr_b32 s{sEP}, s{sTG}, 1")
    def gate_math():
        a(f"v_mov_b32 v{vG+16}, 0")
        for i in range(8): a(f"v_dot2c_f32_bf16 v{vG+16}, v{vG+i}, v{vG+8+i}")
        a("s_nop 3")
        for sh in (1, 2, 4, 8):
            a(f"v_add_f32_dpp v{vG+16}, v{vG+16}, v{vG+16} row_shr:{sh} row_mask:0xf bank_mask:0xf")
            a("s_nop 1")
        a(f"v_add_f32_dpp v{vG+16}, v{vG+16}, v{vG+16} row_bcast:15 row_mask:0xa bank_mask:0xf")
        a("s_nop 1")
        a(f"v_add_f32_dpp v{vG+16}, v{vG+16}, v{vG+16} row_bcast:31 row_mask:0xc bank_mask:0xf")
        a(f"v_cvt_pk_bf16_f32 v{vG+17}, v{vG+16}, v{vG+16}")
        a(f"v_lshlrev_b32 v{vG+17}, 16, v{vG+17}")
        a(f"v_mul_f32 v{vG+17}, {f32(-1.4426950408889634)}, v{vG+17}")
        a(f"v_exp_f32 v{vG+17}, v{vG+17}")
        a("s_nop 0")
        a(f"v_add_f32 v{vG+17}, 1.0, v{vG+17}")
        a(f"v_rcp_f32 v{vG+17}, v{vG+17}")
        a("s_nop 0")
        a(f"v_cvt_pk_bf16_f32 v{vG+17}, v{vG+17}, v{vG+17}")
        a(f"v_lshlrev_b32 v{vG+17}, 16, v{vG+17}")

    def reads(fs, s):
        f = FR[fs]; r = []
        for tb in range(2): r.append(f"ds_read_b128 v[{f+4*tb}:{f+4*tb+3}], v{vCX+s} offset:{tb*4096}")
        for y in range(3):
            for u in range(2):
                d = f + 8 + 4*y + 2*u
                r.append(f"ds_read_b64_tr_b16 v[{d}:{d+1}], v{vCW+y} offset:{s*2048+u*512}")
        return r
    def mfmas(fs):
        f = FR[fs]; m = []
        for y in range(3):
            for tb in range(2):
                x = f"v[{f+4*tb}:{f+4*tb+3}]"; w = f"v[{f+8+4*y}:{f+8+4*y+3}]"
                d = accreg(y, tb); dd = f"v[{d}:{d+15}]"
                m.append(f"v_mfma_f32_32x32x16_bf16 {dd}, {w}, {x}, {dd}" if y < 2 else f"v_mfma_f32_32x32x16_bf16 {dd}, {x}, {w}, {dd}")
        return m
    def step(ms, rs, extra):
        rs = list(rs); extra = list(extra)
        for k, m in enumerate(ms):
            a(m)
            if k < 3:
                for _ in range(3 if k < 2 else 2):
                    if rs: a(rs.pop(0))
            elif extra: extra.pop(0)()
        for r in rs: a(r)
        for e in extra: e()
    for i in range(16):
        issued = min(7*(i-1) + R, NU)
        n = max(issued - 7*(i+1), 0)
        if i == 0: n += 4
        a(f"s_waitcnt vmcnt({n})" + (" lgkmcnt(0)" if i > 0 else ""))
        a("s_barrier")
        if i == 0:
            P.stamp(a)
            def init_sig():
                a(f"v_lshlrev_b32 v{vT0}, 6, v{vLane}")
                a(f"v_mov_b32 v{vT1}, 1")
                lane0(lambda: a(f"buffer_atomic_add v{vT1}, v{vT0}, s[{S_DBG}:{S_DBG+3}], 0 offen sc1"), 4)
            a(f"s_lshl_b32 s{sT0}, s{sW_}, 8")
            a(f"s_add_u32 s{sT0}, s{sT0}, s2")
            guard(f"{name}_ni", f"s_cmp_lt_u32 s{sT0}, 64", init_sig)
        if i == 8:
            a(f"s_and_b32 s{sT0}, s2, 3")
            a(f"s_lshl_b32 s{sT0}, s{sT0}, 6")
            a(f"v_mov_b32 v{vInitA}, s{sT0}")
            def init_poll():
                a(f"buffer_load_dword v{vPoll}, v{vInitA}, s[{S_DBG}:{S_DBG+3}], 0 offen sc1")
            guard(f"{name}_np", f"s_cmp_eq_u32 s{sW_}, 0", init_poll)
        base = (7*i) % R
        a(f"s_add_u32 s{sXB}, s{sWM8}, {base*8192}")
        a(f"s_cmp_ge_u32 s{sXB}, {RB}")
        a(f"s_cselect_b32 s{sT1}, {RB}, 0")
        a(f"s_sub_u32 s{sXB}, s{sXB}, s{sT1}")
        for s in range(4): a(f"v_add_u32 v{vCX+s}, s{sXB}, v{vAX+s}")
        for y in range(3): a(f"v_add_u32 v{vCW+y}, {((7*i+4+y) % R)*8192}, v{vAW}")
        todo = [u for u in range(7*(i-1)+R, 7*i+R) if u < NU]
        dmas = [(lambda u=u: dma(u)) for u in todo]
        if i == 0:
            for r in reads(0, 0): a(r)
            for d in dmas[:2]: d()
            dmas = dmas[2:]
        else:
            step(mfmas(1), reads(0, 0), dmas[:2]); dmas = dmas[2:]
        a("s_waitcnt lgkmcnt(0)")
        step(mfmas(0), reads(1, 1), dmas[:2]); dmas = dmas[2:]
        a("s_waitcnt lgkmcnt(0)")
        step(mfmas(1), reads(0, 2), dmas[:2]); dmas = dmas[2:]
        a("s_waitcnt lgkmcnt(0)")
        step(mfmas(0), reads(1, 3), dmas + [lambda: touch(i + PD)])
        if i == 1:
            gate_math()
    a("s_waitcnt lgkmcnt(0)")
    def spin(label, loadfn, checks):
        a(f"s_mov_b32 s18, {SPIN}")
        a.label(label + "_l")
        for k, (reg, target) in enumerate(checks):
            a(f"v_readfirstlane_b32 s{sT0}, v{reg}")
            a("s_nop 0")
            a(f"s_cmp_ge_u32 s{sT0}, {target}")
            if k + 1 < len(checks): a(f"s_cbranch_scc0 {label}_re")
        a(f"s_cbranch_scc1 {label}_ok")
        a.label(label + "_re")
        a(f"s_sub_u32 s18, s18, 1")
        a(f"s_cmp_eq_u32 s18, 0")
        a(f"s_cbranch_scc1 {label}_ok")
        loadfn()
        a("s_waitcnt vmcnt(0)")
        a(f"s_branch {label}_l")
        a.label(label + "_ok")
    def wave0(label, body): guard(label, f"s_cmp_eq_u32 s{sW_}, 0", body)
    def init_check():
        a("s_waitcnt vmcnt(0)")
        spin(f"{name}_spin0", lambda: a(f"buffer_load_dword v{vPoll}, v{vInitA}, s[{S_DBG}:{S_DBG+3}], 0 offen sc1"), [(vPoll, 64)])
    wave0(f"{name}_chk0", init_check)
    a("s_barrier")
    for m in mfmas(1): a(m)
    P.stamp(a)
    sKVS = 35
    a(f"s_lshl_b32 s{sT0}, s{sBH}, 6")
    a(f"s_lshl_b32 s{sT1}, s{sE}, 3")
    a(f"s_add_u32 s{sT0}, s{sT0}, s{sT1}")
    a(f"s_lshl_b32 s{sT1}, s{sWM}, 1")
    a(f"s_add_u32 s{sT0}, s{sT0}, s{sT1}")
    a(f"s_lshl_b32 s16, s{sT0}, 12")
    a(f"v_mov_b32 v{vT1}, s{sGOFF}")
    a(f"v_add_u32 v{vT1}, {WS_G}, v{vT1}")
    a(f"s_add_u32 s{sKVS}, s16, {WS_KV}")
    a(f"v_cmp_eq_u32 vcc, 63, v{vLane}")
    a(f"s_and_saveexec_b64 s[16:17], vcc")
    a(f"buffer_store_dword v{vG+17}, v{vT1}, s[{S_WS}:{S_WS+3}], 0 offen sc1")
    a(f"s_mov_b64 exec, s[16:17]")
    a(f"s_lshl_b32 s{sT0}, s{sWM}, 14")
    a(f"s_lshl_b32 s{sT1}, s{sHH}, 13")
    a(f"s_add_u32 s{sT0}, s{sT0}, s{sT1}")
    a(f"v_add_u32 v6, s{sT0}, v{vOff}")
    tiles = [(1, 0), (1, 1), (2, 0), (2, 1)]
    for n, (y, tb) in enumerate(tiles):
        d = accreg(y, tb); p = KVP + n*8
        for r in range(8): a(f"v_cvt_pk_bf16_f32 v{p+r}, v{d+2*r}, v{d+2*r+1}")
        off = 0 if y == 1 else 2048
        for m in range(2):
            a(f"ds_write_b128 v6, v[{p+4*m}:{p+4*m+3}] offset:{tb*4096+off+m*1024}")
    def kv_stores():
        for n, (y, tb) in enumerate(tiles):
            p = KVP + n*8; off = 0 if y == 1 else 2048
            a(f"s_add_u32 s{sT1}, s{sKVS}, {tb*4096}")
            for m in range(2):
                a(f"buffer_store_dwordx4 v[{p+4*m}:{p+4*m+3}], v{vOff}, s[{S_WS}:{S_WS+3}], s{sT1} offen offset:{off+m*1024} sc1")
    def level_stores(j): guard(f"{name}_st{j}", f"s_cmp_eq_u32 s{sWM}, {j}", kv_stores)
    level_stores(0)
    Q = {"A": 8, "B": 16}
    a(f"s_mov_b32 s{sT0}, {f32(QSCALE)}")
    for tb, qb in enumerate("AB"):
        d = accreg(0, tb)
        for r in range(16): a(f"v_mul_f32 v{d+r}, s{sT0}, v{d+r}")
        for r in range(8): a(f"v_cvt_pk_bf16_f32 v{Q[qb]+r}, v{d+2*r}, v{d+2*r+1}")
    a(f"s_cmp_eq_u32 s{sHH}, 0")
    a(f"s_cselect_b32 s{S_A}, s{pWOA}, s{pWOB}")
    a(f"s_cselect_b32 s{S_A+1}, s{pWOA+1}, s{pWOB+1}")
    a(f"s_mov_b32 s{S_A+2}, {1024*1024*2}")
    a(f"s_mov_b32 s{S_A+3}, 0x20000")
    srd(a, S_B, pOUT, pOUT+1, 2048*1024*2)
    a(f"v_lshrrev_b32 v{vT0}, 3, v{vLane}")
    a(f"s_lshl_b32 s{sT0}, s{sWM}, 4")
    a(f"v_add_u32 v{vT0}, s{sT0}, v{vT0}")
    a(f"v_bfe_u32 v{vT1}, v{vT0}, 1, 1")
    a(f"v_lshlrev_b32 v{vT1}, 2, v{vT1}")
    a(f"v_and_b32 v{vT2}, 7, v{vLane}")
    a(f"v_xor_b32 v{vT1}, v{vT1}, v{vT2}")
    a(f"v_lshlrev_b32 v{vT1}, 4, v{vT1}")
    a(f"v_lshl_add_u32 v{vOffW3}, v{vT0}, 11, v{vT1}")
    a(f"s_lshl_b32 s{sWO3}, s{sCG}, 7")
    a(f"s_lshl_b32 s{sLW3}, s{sHH}, 13")
    a(f"s_lshl_b32 s{sT0}, s{sWM}, 11")
    a(f"s_add_u32 s{sLW3}, s{sLW3}, s{sT0}")
    STB = 16384
    SL = [131072, 147456, 0, 16384, 32768, 49152, 65536, 81920, 98304, 114688]
    def wo_dma(st):
        r = []
        for p in range(2):
            r.append([f"s_add_u32 m0, s{sLW3}, {SL[st % 10] + p*1024}", f"s_add_u32 s{sT1}, s{sWO3}, {st*64*2048 + p*8*2048}"])
            r.append([f"buffer_load_dwordx4 v{vOffW3}, s[{S_A}:{S_A+3}], s{sT1} offen lds"])
        return r

    sKVw, sLW, sCnt, sBc, sBn, sQi = 30, 31, 32, 33, 34, 19
    vRd, vIdx = 6, 7
    KF = [24, 32]; VF = [40, 48]; PP = {"A": 56, "B": 64}; L = {"A": 72, "B": 76}; ONES = 80
    SS = {"A": 96, "B": 112}; O = {"A": 128, "B": 144}; CM = {"A": 160, "B": 176}; TMP = 192
    a(f"s_lshl_b32 s{sKVw}, s{sBH}, 18")
    a(f"s_lshl_b32 s{sT0}, s{sWM}, 11")
    a(f"s_add_u32 s{sKVw}, s{sKVw}, s{sT0}")
    a(f"s_add_u32 s{sKVw}, s{sKVw}, {WS_KV}")
    a(f"s_lshl_b32 s{sLW}, s{sHH}, 13")
    a(f"v_add_u32 v{vRd}, s{sLW}, v{vOff}")
    a(f"v_add_u32 v{vRdH}, 65536, v{vRd}")
    a(f"s_add_u32 s{sLW}, s{sLW}, s{sT0}")
    a(f"s_add_u32 s{sLW}, s{sLW}, 65536")
    def setbase(dst, q):
        return [f"s_add_u32 s{dst}, s{sE}, {q}", f"s_and_b32 s{dst}, s{dst}, 7", f"s_lshl_b32 s{dst}, s{dst}, 15", f"s_add_u32 s{dst}, s{dst}, s{sKVw}"]
    for i in setbase(sBc, 1): a(i)
    for i in setbase(sBn, 2): a(i)
    a(f"s_lshl_b32 s{sT0}, s{sG}, 8")
    a(f"s_add_u32 s{sT0}, s{sT0}, {WS_F}")
    a(f"v_mov_b32 v{vC1}, s{sT0}")
    a(f"v_bfe_u32 v{vT0}, v{vLane}, 2, 1")
    a(f"v_cmp_eq_u32 vcc, 0, v{vT0}")
    a(f"v_mov_b32 v{vT1}, 0x3f803f80")
    a(f"v_and_b32 v{vT2}, 1, v{vLane}")
    a(f"v_cndmask_b32 v{ONES}, 0, v{vT1}, vcc")
    a(f"v_mov_b32 v{ONES+1}, v{ONES}")
    a(f"v_sub_u32 v{ONES+2}, v{vT1}, v{ONES}")
    a(f"v_mov_b32 v{ONES+3}, v{ONES+2}")
    a(f"v_cmp_eq_u32 vcc, 0, v{vT2}")
    a(f"v_mov_b32 v{vT1}, 0x4444")
    a(f"v_mov_b32 v{vT2}, 0xeeee")
    a(f"v_cndmask_b32 v{vIdx}, v{vT2}, v{vT1}, vcc")
    for qb in "AB":
        for i in range(16): a(f"v_mov_b32 v{O[qb]+i}, 0")
        for i in range(4): a(f"v_mov_b32 v{L[qb]+i}, 0")
    a("s_waitcnt lgkmcnt(0)")
    a("s_barrier")
    P.stamp(a)

    def rdK(fs, reg, slot, blk): return [f"ds_read_b128 v[{KF[fs]+4*m}:{KF[fs]+4*m+3}], v{reg} offset:{slot*STB + blk*4096 + m*1024}" for m in range(2)]
    def rdV(fs, reg, slot, blk): return [f"ds_read_b128 v[{VF[fs]+4*m}:{VF[fs]+4*m+3}], v{reg} offset:{slot*STB + blk*4096 + 2048 + m*1024}" for m in range(2)]
    def QK(qb, fs, c0):
        s = SS[qb]
        return [f"v_mfma_f32_32x32x16_bf16 v[{s}:{s+15}], v[{KF[fs]}:{KF[fs]+3}], v[{Q[qb]}:{Q[qb]+3}], {c0}",
                f"v_mfma_f32_32x32x16_bf16 v[{s}:{s+15}], v[{KF[fs]+4}:{KF[fs]+7}], v[{Q[qb]+4}:{Q[qb]+7}], v[{s}:{s+15}]"]
    def PV(qb, fs):
        o = O[qb]; p = PP[qb]
        return [f"v_mfma_f32_32x32x16_bf16 v[{o}:{o+15}], v[{VF[fs]}:{VF[fs]+3}], v[{p}:{p+3}], v[{o}:{o+15}]",
                f"v_mfma_f32_32x32x16_bf16 v[{o}:{o+15}], v[{VF[fs]+4}:{VF[fs]+7}], v[{p+4}:{p+7}], v[{o}:{o+15}]"]
    def SUM(qb):
        l = L[qb]; p = PP[qb]
        return [f"v_smfmac_f32_16x16x64_bf16 v[{l}:{l+3}], v[{ONES}:{ONES+3}], v[{p}:{p+7}], v{vIdx}"]
    def EXP(qb): s = SS[qb]; return [f"v_exp_f32 v{s+i}, v{s+i}" for i in range(16)]
    def CVT(qb): s = SS[qb]; p = PP[qb]; return [f"v_cvt_pk_bf16_f32 v{p+i}, v{s+2*i}, v{s+2*i+1}" for i in range(8)]
    cm = lambda qb: f"v[{CM[qb]}:{CM[qb]+15}]"
    def rowmax_to_cm(src, qb):
        a(f"v_max3_f32 v{TMP}, v{src}, v{src+1}, v{src+2}")
        for i in range(3, 15, 2): a(f"v_max3_f32 v{TMP}, v{TMP}, v{src+i}, v{src+i+1}")
        a(f"v_max_f32 v{TMP}, v{TMP}, v{src+15}")
        a(f"v_mov_b32 v{TMP+1}, v{TMP}")
        a("s_nop 1")
        a(f"v_permlane32_swap_b32 v{TMP}, v{TMP+1}")
        a("s_nop 0")
        a(f"v_max_f32 v{TMP}, v{TMP}, v{TMP+1}")
        for i in range(16): a(f"v_sub_f32 v{CM[qb]+i}, 0, v{TMP}")
    for r in rdK(0, vRd, 0, 0): a(r)
    a("s_waitcnt lgkmcnt(0)")
    for qb in "AB":
        for m in QK(qb, 0, "0"): a(m)
    a("s_nop 7"); a("s_nop 3")
    for qb in "AB": rowmax_to_cm(SS[qb], qb)

    def half(X, Y, qk, pv, valu_on, slots=()):
        e = EXP(Y) if valu_on else []; c = CVT(Y) if valu_on else []
        mq = QK(X, qk, cm(X)) if qk is not None else []
        mp = PV(X, pv) if pv is not None else []
        ms = SUM(X) if pv is not None else []
        slots = list(slots)
        def em(l, i):
            if i < len(l): a(l[i])
        def slot():
            if slots:
                grp = slots.pop(0)
                if callable(grp): grp()
                else:
                    for i in grp: a(i)
        ei = ci = 0
        for tok in ORDER.split():
            if tok == "e": em(e, ei); ei += 1
            elif tok == "c": em(c, ci); ci += 1
            elif tok[0] == "Q": em(mq, int(tok[1])); slot()
            elif tok[0] == "P": em(mp, int(tok[1])); slot()
            elif tok[0] == "S": em(ms, 0); slot()
        while slots: slot()
        if not valu_on:
            a("s_nop 7"); a("s_nop 3")
    def blockstep(n_par, first, last, slotsA=(), slotsB=()):
        ks = n_par; vs = 1 - n_par
        half("A", "B", None if last else ks, None if first else vs, not first, slotsA)
        half("B", "A", None if last else ks, None if first else vs, not last, slotsB)
    g = lambda lst: [[x] for x in lst]
    def kv_dma(rho_j, base):
        r = []
        for p in range(2):
            r.append([f"s_add_u32 m0, s{sLW}, {rho_j*STB + p*1024}", f"s_add_u32 s{sT1}, s{base}, {rho_j*8192 + p*1024}"])
            r.append([f"buffer_load_dwordx4 v{vOff}, s[{S_WS}:{S_WS+3}], s{sT1} offen sc1 lds"])
        return r
    def loc(sig): return (vRd, sig) if sig < 4 else (vRdH, sig % 4)
    def stage(cur, nxt, top, extraB=(), extraC=(), extraD=()):
        top()
        rk = rdK(0, nxt[0], nxt[1], 0); rv = rdV(1, cur[0], cur[1], 1)
        blockstep(1, False, False, slotsA=g(rk + rv), slotsB=list(extraB) + [["s_waitcnt lgkmcnt(0)"]])
        rk = rdK(1, nxt[0], nxt[1], 1); rv = rdV(0, nxt[0], nxt[1], 0)
        blockstep(0, False, False, slotsA=g(rk + rv) + list(extraC), slotsB=list(extraD))
    def top_plain(vm):
        def f():
            a(f"s_waitcnt vmcnt({vm}) lgkmcnt(0)")
            a("s_barrier")
        return f
    def c1_load(): a(f"buffer_load_dwordx4 v[{vPoll}:{vPoll+3}], v{vC1}, s[{S_WS}:{S_WS+3}], 0 offen sc1")
    def level_signal(j, vm):
        def body():
            if vm is not None: a(f"s_waitcnt vmcnt({vm})")
            a(f"v_mov_b32 v{vT1}, 1")
            lane0(lambda: a(f"buffer_atomic_add v{vT1}, v{vC1}, s[{S_WS}:{S_WS+3}], 0 offen offset:{4*j} sc1"))
        guard(f"{name}_sg{j}", f"s_cmp_eq_u32 s{sWM}, {j}", body)
    def level_check(j):
        wave0(f"{name}_ck{j}", lambda: spin(f"{name}_sp{j+1}", c1_load, [(vPoll + j, 16)]))
    def poll(j): wave0(f"{name}_pl{j}", c1_load)

    blockstep(0, True, False, g(rdK(1, vRd, 0, 1) + rdV(0, vRd, 0, 0)), slotsB=[lambda: level_stores(1)])
    def top0():
        a("s_waitcnt lgkmcnt(0)")
        level_signal(0, 0)
    stage(loc(0), loc(1), top0, extraD=[lambda: level_stores(2)])
    def top1():
        a("s_waitcnt lgkmcnt(0)")
        level_signal(1, 0)
        poll(0)
    stage(loc(1), loc(2), top1, extraD=[lambda: level_stores(3)])
    def top2():
        level_signal(2, 0)
        wave0(f"{name}_w2", lambda: a("s_waitcnt vmcnt(0)"))
        level_check(0)
        a("s_waitcnt lgkmcnt(0)")
        a("s_barrier")
        if "p3prof" not in opt: P.stamp(a)
        poll(1)
    stage(loc(2), loc(3), top2, extraB=kv_dma(0, sBc))
    def top3():
        a("s_waitcnt vmcnt(0) lgkmcnt(0)")
        level_signal(3, None)
        level_check(1)
        a("s_barrier")
        poll(2)
    stage(loc(3), loc(4), top3, extraB=kv_dma(1, sBc))
    def top4():
        a("s_waitcnt vmcnt(0) lgkmcnt(0)")
        level_check(2)
        a("s_barrier")
        poll(3)
    stage(loc(4), loc(5), top4, extraB=kv_dma(2, sBc))
    def top5():
        a("s_waitcnt vmcnt(0) lgkmcnt(0)")
        level_check(3)
        a("s_barrier")
        if "p3prof" not in opt: P.stamp(a)
    stage(loc(5), loc(6), top5, extraB=kv_dma(3, sBc), extraD=kv_dma(0, sBn))
    a(f"s_mov_b32 s{sBc}, s{sBn}")
    for i in setbase(sBn, 3): a(i)
    a(f"s_mov_b32 s{sCnt}, 0")
    a(f"s_mov_b32 s{sQi}, 4")
    a.label(f"{name}_loop")
    for i in range(4):
        j = (2 + i) % 4
        exB = kv_dma(i + 1, sBc) if i < 3 else kv_dma(0, sBn)
        exD = []
        if i == 3:
            exD = [[f"s_mov_b32 s{sBc}, s{sBn}", f"s_add_u32 s{sBn}, s{sE}, s{sQi}"], [f"s_and_b32 s{sBn}, s{sBn}, 7", f"s_lshl_b32 s{sBn}, s{sBn}, 15"],
                   [f"s_add_u32 s{sBn}, s{sBn}, s{sKVw}", f"s_add_u32 s{sQi}, s{sQi}, 1"], [f"s_add_u32 s{sCnt}, s{sCnt}, 1"], [f"s_cmp_lt_u32 s{sCnt}, 5"]]
        stage((vRdH, j), (vRdH, (j+1) % 4), top_plain(2), extraB=exB, extraD=exD)
    a(f"s_cbranch_scc1 {name}_loop")
    stage(loc(26), loc(27), top_plain(2), extraB=kv_dma(1, sBc), extraD=wo_dma(0))
    stage(loc(27), loc(28), top_plain(4), extraB=kv_dma(2, sBc), extraD=wo_dma(1))
    stage(loc(28), loc(29), top_plain(6), extraB=kv_dma(3, sBc), extraD=wo_dma(2))
    stage(loc(29), loc(30), top_plain(6), extraB=wo_dma(3), extraD=wo_dma(4))
    stage(loc(30), loc(31), top_plain(6), extraB=wo_dma(5))
    a("s_waitcnt lgkmcnt(0)")
    blockstep(1, False, False, slotsA=g(rdV(1, vRdH, 3, 1)))
    a("s_waitcnt lgkmcnt(0)")
    half("A", "B", None, 1, True)
    a("s_nop 1")
    half("B", "A", None, 1, False)
    P.stamp(a)
    def normalise():
        for qb in "AB": a(f"v_add_f32 v{L[qb]}, v{L[qb]}, v{L[qb]+1}")
        for qb in "AB":
            a(f"v_rcp_f32 v{TMP}, v{L[qb]}")
            a("s_nop 0")
            for i in range(16): a(f"v_mul_f32 v{O[qb]+i}, v{O[qb]+i}, v{TMP}")
    a("s_nop 7")
    normalise()
    a(f"v_mov_b32 v{TMP+1}, 0")
    for qb in "AB":
        for i in range(16): a(f"v_fma_f32 v{TMP+1}, v{O[qb]+i}, 0, v{TMP+1}")
    a(f"s_mov_b32 s{sT0}, {f32(2.0**40)}")
    a(f"v_cmp_nle_f32 vcc, v{L['A']}, s{sT0}")
    a(f"v_cmp_nle_f32 s[16:17], v{L['B']}, s{sT0}")
    a(f"v_cmp_u_f32 s[18:19], v{TMP+1}, v{TMP+1}")
    a("s_or_b64 vcc, vcc, s[16:17]")
    a("s_or_b64 vcc, vcc, s[18:19]")
    a(f"s_cbranch_vccnz {name}_fallback")
    a.label(f"{name}_store_o")
    a(f"s_lshl_b32 s{sT0}, s{sE}, 3")
    a(f"s_lshl_b32 s{sT1}, s{sWM}, 1")
    a(f"s_add_u32 s{sT0}, s{sT0}, s{sT1}")
    a(f"s_lshl_b32 s{sT0}, s{sT0}, 17")
    a(f"s_lshl_b32 s{sT1}, s{sBH}, 11")
    a(f"s_add_u32 s{sT0}, s{sT0}, s{sT1}")
    a(f"s_add_u32 s33, s{sT0}, {WS_OF}")
    for qi, qb in enumerate("AB"):
        p = PP[qb]
        for i in range(8): a(f"v_cvt_pk_bf16_f32 v{p+i}, v{O[qb]+2*i}, v{O[qb]+2*i+1}")
        a(f"s_add_u32 s{sT0}, s33, {qi*131072}")
        for m in range(2):
            a(f"buffer_store_dwordx4 v[{p+4*m}:{p+4*m+3}], v{vOff}, s[{S_WS}:{S_WS+3}], s{sT0} offen offset:{m*1024} sc1")

    sOF = 30
    OFR = 16; NBO = 8; WFR = OFR + NBO*16; ACC3 = WFR + 64; vG3 = 242
    vAW0, vAW1, vAWm0, vAWm1, vAWh0, vAWh1, vC2, vC2p = 8, 9, 10, 11, 12, 13, 14, 15
    tr_pattern(vAW0, 2, None)
    a(f"s_lshl_b32 s{sT0}, s{sHH}, 13")
    a(f"v_add_u32 v{vAW0}, s{sT0}, v{vAW0}")
    a(f"v_xor_b32 v{vAW1}, 64, v{vAW0}")
    a(f"v_add_u32 v{vAWm0}, 65536, v{vAW0}")
    a(f"v_add_u32 v{vAWm1}, 65536, v{vAW1}")
    a(f"v_add_u32 v{vAWh0}, 131072, v{vAW0}")
    a(f"v_add_u32 v{vAWh1}, 131072, v{vAW1}")
    a(f"s_lshl_b32 s{sT0}, s{sTG}, 2")
    a(f"s_add_u32 s{sT0}, s{sT0}, s{sWM}")
    a(f"s_lshl_b32 s{sOF}, s{sT0}, 17")
    a(f"s_lshl_b32 s{sT1}, s{sHH}, 16")
    a(f"s_add_u32 s{sOF}, s{sOF}, s{sT1}")
    a(f"s_add_u32 s{sOF}, s{sOF}, {WS_OF}")
    a(f"s_lshl_b32 s{sT0}, s{sE}, 10")
    a(f"s_add_u32 s{sT0}, s{sT0}, {WS_F + 32*256}")
    a(f"v_lshlrev_b32 v{vC2}, 8, v{vLane}")
    a(f"v_add_u32 v{vC2}, s{sT0}, v{vC2}")
    a(f"s_lshl_b32 s{sT0}, s{sEP}, 2")
    a(f"s_bfe_u32 s{sT1}, s2, 0x20005")
    a(f"s_add_u32 s{sT0}, s{sT0}, s{sT1}")
    a(f"s_lshl_b32 s{sT0}, s{sT0}, 8")
    a(f"s_add_u32 s{sT0}, s{sT0}, {WS_F + 32*256}")
    a(f"v_mov_b32 v{vC2p}, s{sT0}")
    a("s_waitcnt vmcnt(0)")
    a("s_barrier")
    P.stamp(a)
    def c2_load(): a(f"buffer_load_dword v{vPoll}, v{vC2p}, s[{S_WS}:{S_WS+3}], 0 offen sc1")
    def sig2():
        a(f"v_mov_b32 v{vT1}, 1")
        lane0(lambda: a(f"buffer_atomic_add v{vT1}, v{vC2}, s[{S_WS}:{S_WS+3}], 0 offen sc1"), 4)
    wave0(f"{name}_sig2", sig2)
    for st in range(6, 10):
        for grp in wo_dma(st):
            for i in grp: a(i)
    for i in range(32): a(f"v_mov_b32 v{ACC3+i}, 0")
    def wait2():
        c2_load()
        a("s_waitcnt vmcnt(0)")
        spin(f"{name}_spin2", c2_load, [(vPoll, 32)])
    wave0(f"{name}_wt2", wait2)
    a("s_waitcnt vmcnt(0)")
    a("s_barrier")
    P.stamp(a)
    ops = []
    def issueO(st):
        o = OFR + (st % NBO)*16
        a(f"s_add_u32 s{sT0}, s{sOF}, {st*4096}")
        for c in range(4):
            a(f"buffer_load_dwordx4 v[{o+4*c}:{o+4*c+3}], v{vOff}, s[{S_WS}:{S_WS+3}], s{sT0} offen offset:{c*1024}" + ("" if "plainO" in opt else " sc1"))
            ops.append(("O", st))
    def issueW(st):
        for grp in wo_dma(st):
            for i in grp: a(i)
        ops.append(("W", st)); ops.append(("W", st))
    def need(tags):
        last = max([i for i, t in enumerate(ops) if t in tags] + [-1])
        return len(ops) - 1 - last
    D0 = int(([x[2:] for x in opt if x.startswith("d0")] + ["2"])[0])
    nxtO = 0
    for st in range(D0): issueO(st); nxtO += 1
    a(f"v_lshrrev_b32 v{vG3+5}, 3, v0")
    a(f"s_lshl_b32 s{sT0}, s{sTG}, 7")
    a(f"v_add_u32 v{vG3+6}, s{sT0}, v{vG3+5}")
    a(f"v_lshlrev_b32 v{vG3}, 2, v{vG3+6}")
    a(f"v_add_u32 v{vG3}, {WS_G}, v{vG3}")
    a(f"buffer_load_dword v{vG3+1}, v{vG3}, s[{S_WS}:{S_WS+3}], 0 offen sc1"); ops.append(("G", 0))
    a(f"buffer_load_dword v{vG3+2}, v{vG3}, s[{S_WS}:{S_WS+3}], 0 offen offset:256 sc1"); ops.append(("G", 0))
    def rdW(st):
        slot = SL[st % 10]; r = []
        for c in range(4):
            for ct in range(2):
                for u in range(2):
                    d = WFR + (st & 1)*32 + c*8 + ct*4 + 2*u
                    off = (32*(c >> 1) + 16*(c & 1) + 8*u)*128
                    if slot >= 131072: ad = (vAWh0, vAWh1)[ct]; off += slot - 131072
                    elif slot >= 65536: ad = (vAWm0, vAWm1)[ct]; off += slot - 65536
                    else: ad = (vAW0, vAW1)[ct]; off += slot
                    r.append(f"ds_read_b64_tr_b16 v[{d}:{d+1}], v{ad} offset:{off}")
        return r
    for r in rdW(0)[:8]: a(r)
    a("s_waitcnt lgkmcnt(4)")
    for r in rdW(0)[8:]: a(r)
    for st in range(16):
        tags = {('O', st)}
        if st == 9: tags |= {('W', 10), ('W', 11), ('W', 12)}
        if st == 12: tags |= {('W', 13), ('W', 14), ('W', 15)}
        a(f"s_waitcnt vmcnt({need(tags)}) lgkmcnt(0)")
        if "p3prof" in opt and st in (0, 4, 8, 12): P.stamp(a)
        if st in (3, 6, 9, 12): a("s_barrier")
        pend = []
        if st == 3: pend += [lambda w=w: issueW(w) for w in (10, 11, 12)]
        if st == 6: pend += [lambda w=w: issueW(w) for w in (13, 14, 15)]
        for _ in range(2):
            if nxtO < 16 and nxtO < st + NBO:
                pend.append(lambda o=nxtO: issueO(o)); nxtO += 1
        rs = rdW(st + 1) if st < 15 else []
        k = 0
        for c in range(4):
            o = OFR + (st % NBO)*16 + 4*c
            for ct in range(2):
                w = WFR + (st & 1)*32 + c*8 + ct*4; d = ACC3 + ct*16
                a(f"v_mfma_f32_32x32x16_bf16 v[{d}:{d+15}], v[{w}:{w+3}], v[{o}:{o+3}], v[{d}:{d+15}]")
                if k == 4 and rs: a("s_waitcnt lgkmcnt(8)")
                if k < 6:
                    for _ in range(3 if k < 4 else 2):
                        if rs: a(rs.pop(0))
                if pend and k >= 1: pend.pop(0)()
                k += 1
        for f in pend: f()
        assert not rs
    P.stamp(a)
    RSTR = 272; AREA = 128*RSTR
    a("s_barrier")
    a(f"v_and_b32 v{vT0}, 31, v{vLane}")
    a(f"s_lshl_b32 s{sT0}, s{sWM}, 5")
    a(f"v_add_u32 v{vT0}, s{sT0}, v{vT0}")
    a(f"v_mul_u32_u24 v{vT0}, {RSTR}, v{vT0}")
    a(f"v_lshrrev_b32 v{vT1}, 5, v{vLane}")
    a(f"v_lshl_add_u32 v{vT0}, v{vT1}, 4, v{vT0}")
    a(f"s_mul_i32 s{sT0}, s{sHH}, {AREA}")
    a(f"v_add_u32 v{vT0}, s{sT0}, v{vT0}")
    a(f"v_and_b32 v{vG3+3}, 7, v0")
    a(f"v_mul_u32_u24 v{vG3+4}, {RSTR}, v{vG3+5}")
    a(f"v_lshl_add_u32 v{vG3+4}, v{vG3+3}, 5, v{vG3+4}")
    a(f"v_lshlrev_b32 v{vG3+5}, 11, v{vG3+6}")
    a(f"v_lshl_add_u32 v{vG3+5}, v{vG3+3}, 4, v{vG3+5}")
    a(f"s_lshl_b32 s{sT1}, s{sCG}, 7")
    a("s_nop 1")
    for ct in range(2):
        for q in range(4):
            d = ACC3 + ct*16 + 4*q
            a(f"ds_write_b128 v{vT0}, v[{d}:{d+3}] offset:{ct*128 + q*32}")
    a("s_waitcnt lgkmcnt(0)")
    a("s_barrier")
    for hf in range(2):
        ra, rb = OFR + hf*16, OFR + hf*16 + 8
        off = hf*64*RSTR
        a(f"ds_read_b128 v[{ra}:{ra+3}], v{vG3+4} offset:{off}")
        a(f"ds_read_b128 v[{ra+4}:{ra+7}], v{vG3+4} offset:{off+16}")
        a(f"ds_read_b128 v[{rb}:{rb+3}], v{vG3+4} offset:{off+AREA}")
        a(f"ds_read_b128 v[{rb+4}:{rb+7}], v{vG3+4} offset:{off+AREA+16}")
    a("s_waitcnt vmcnt(0) lgkmcnt(0)")
    for hf in range(2):
        ra, rb = OFR + hf*16, OFR + hf*16 + 8
        gg = vG3 + 1 + hf
        a(f"v_sub_f32 v{vG3+7}, 1.0, v{gg}")
        a(f"v_cvt_pk_bf16_f32 v{vG3+7}, v{vG3+7}, v{vG3+7}")
        a(f"v_lshlrev_b32 v{vG3+7}, 16, v{vG3+7}")
        for i in range(8): a(f"v_mul_f32 v{ra+i}, v{ra+i}, v{gg}")
        for i in range(8): a(f"v_fmac_f32 v{ra+i}, v{rb+i}, v{vG3+7}")
        p = OFR + 32 + hf*4
        for i in range(4): a(f"v_cvt_pk_bf16_f32 v{p+i}, v{ra+2*i}, v{ra+2*i+1}")
        a(f"s_add_u32 s{sT0}, s{sT1}, {hf*64*2048}")
        a(f"buffer_store_dwordx4 v[{p}:{p+3}], v{vG3+5}, s[{S_B}:{S_B+3}], s{sT0} offen" + (" sc1" if "outsc1" in opt else "") + (" nt" if "outnt" in opt else "") + (" sc0 sc1" if "outsc01" in opt else ""))
    if prof:
        a("s_waitcnt vmcnt(0)")
        P.stamp(a)
    if "dbgprof" in opt: P.flush_dbg(a, sW_, S_DBG, name)
    else: P.flush(a, sW_, pWS, pWS+1, name)
    if "padto" in "".join(opt):
        ticks = int([x[5:] for x in opt if x.startswith("padto")][0])
        a.label(f"{name}_pad")
        a("s_memrealtime s[66:67]")
        a("s_waitcnt lgkmcnt(0)")
        a("s_sub_u32 s66, s66, s64")
        a(f"s_cmp_lt_u32 s66, {ticks}")
        a(f"s_cbranch_scc1 {name}_pad")
    a.label(f"{name}_end")
    a("s_endpgm")

    a.label(f"{name}_fallback")
    sFS = 33
    a("s_waitcnt vmcnt(0)")
    for qb in "AB":
        for i in range(16): a(f"v_mov_b32 v{CM[qb]+i}, 0xff800000")
    a(f"s_lshl_b32 s{sT0}, s{sWM}, 11")
    a(f"s_sub_u32 s{sFS}, s{sKVw}, s{sT0}")
    a(f"s_mov_b32 s{sCnt}, 0")
    a.label(f"{name}_fb_max")
    for m in range(2):
        a(f"buffer_load_dwordx4 v[{KF[0]+4*m}:{KF[0]+4*m+3}], v{vOff}, s[{S_WS}:{S_WS+3}], s{sFS} offen offset:{m*1024} sc1")
    a("s_waitcnt vmcnt(0)")
    for qb in "AB":
        for m in QK(qb, 0, "0"): a(m)
    a("s_nop 7"); a("s_nop 3")
    for qb in "AB":
        for i in range(16): a(f"v_max_f32 v{CM[qb]+i}, v{CM[qb]+i}, v{SS[qb]+i}")
    a(f"s_add_u32 s{sFS}, s{sFS}, 4096")
    a(f"s_add_u32 s{sCnt}, s{sCnt}, 1")
    a(f"s_cmp_lt_u32 s{sCnt}, 64")
    a(f"s_cbranch_scc1 {name}_fb_max")
    for qb in "AB": rowmax_to_cm(CM[qb], qb)
    for qb in "AB":
        for i in range(16): a(f"v_mov_b32 v{O[qb]+i}, 0")
        for i in range(4): a(f"v_mov_b32 v{L[qb]+i}, 0")
    a(f"s_sub_u32 s{sFS}, s{sFS}, {64*4096}")
    a(f"s_mov_b32 s{sCnt}, 0")
    a.label(f"{name}_fb_pv")
    for m in range(2):
        a(f"buffer_load_dwordx4 v[{KF[0]+4*m}:{KF[0]+4*m+3}], v{vOff}, s[{S_WS}:{S_WS+3}], s{sFS} offen offset:{m*1024} sc1")
        a(f"buffer_load_dwordx4 v[{VF[0]+4*m}:{VF[0]+4*m+3}], v{vOff}, s[{S_WS}:{S_WS+3}], s{sFS} offen offset:{2048+m*1024} sc1")
    a("s_waitcnt vmcnt(0)")
    for qb in "AB":
        for m in QK(qb, 0, cm(qb)): a(m)
    a("s_nop 7"); a("s_nop 3")
    for qb in "AB":
        for i in EXP(qb): a(i)
    a("s_nop 0")
    for qb in "AB":
        for i in CVT(qb): a(i)
    a("s_nop 1")
    for qb in "AB":
        for m in PV(qb, 0): a(m)
        for m in SUM(qb): a(m)
    a(f"s_add_u32 s{sFS}, s{sFS}, 4096")
    a(f"s_add_u32 s{sCnt}, s{sCnt}, 1")
    a(f"s_cmp_lt_u32 s{sCnt}, 64")
    a(f"s_cbranch_scc1 {name}_fb_pv")
    a("s_nop 7"); a("s_nop 7")
    normalise()
    a(f"s_branch {name}_store_o")
    return a.text(), 252, 163840
```
